```python
import torch

def _softmax(x, axis=-1):
    return torch.softmax(x, dim=axis)
def _gelu(x):
    return torch.nn.functional.gelu(x, approximate="tanh")
def _silu(x):
    return torch.nn.functional.silu(x)
def _sigmoid(x):
    return torch.sigmoid(x)
def _layernorm(x, axis=-1, eps=1e-5):
    m = x.mean(dim=axis, keepdim=True)
    v = x.var(dim=axis, keepdim=True, unbiased=False)
    return (x - m) / torch.sqrt(v + eps)
def _scatter_add(tgt, idx, src, axis=0):
    return tgt.clone().index_add_(axis, idx, src)
def _segment_sum(src, seg, n):
    out = torch.zeros((n,) + src.shape[1:], dtype=src.dtype)
    return out.index_add_(0, seg, src)
def _pad(x, pw):
    flat = tuple(v for pair in reversed(pw) for v in pair)
    return torch.nn.functional.pad(x, flat)

kernel_name = 'gated_mix__linear_kernel_hedgehog__mixer_s_mlp__prompt'

def setup_inputs():

    _w = (lambda a: (lambda t: t.to(torch.bfloat16) if t.is_floating_point() else t)(torch.as_tensor(a)))
    def _A_setup():
        B, S, D, H = 1, 2048, 512, 32
        Dh = D // H
        return {
            "x": _w((lambda *s: torch.randn(*s, dtype=torch.bfloat16) * 0.05)(B, S, D)),
            "wqkv": _w((lambda *s: torch.randn(*s, dtype=torch.bfloat16) * 3.2)(D, 3 * D)),
            "w_phi": _w((lambda *s: torch.randn(*s, dtype=torch.bfloat16) * 3.2)(H, Dh, Dh) * (Dh ** -0.5)),
            "wo": _w((lambda *s: torch.randn(*s, dtype=torch.bfloat16) * 1.6)(D, D)),
        }
    _A_in = _A_setup()

    def _B_setup():
        B, S, D, F = 1, 2048, 512, 1376
        return {
            "x":  _w((lambda *s: torch.randn(*s, dtype=torch.bfloat16) * 0.05)(B, S, D)),
            "w1": _w((lambda *s: torch.randn(*s, dtype=torch.bfloat16) * 3.2)(D, D) * (D ** -0.5)),
            "w2": _w((lambda *s: torch.randn(*s, dtype=torch.bfloat16) * 3.2)(D, D) * (D ** -0.5)),
            "w3": _w((lambda *s: torch.randn(*s, dtype=torch.bfloat16) * 3.2)(D, F) * (D ** -0.5)),
            "w4": _w((lambda *s: torch.randn(*s, dtype=torch.bfloat16) * 3.2)(F, D) * (F ** -0.5)),
        }
    _B_in = _B_setup()

    return {
        "A_x": _A_in["x"],
        "A_wqkv": _A_in["wqkv"],
        "A_w_phi": _A_in["w_phi"],
        "A_wo": _A_in["wo"],
        "B_x": _B_in["x"],
        "B_w1": _B_in["w1"],
        "B_w2": _B_in["w2"],
        "B_w3": _B_in["w3"],
        "B_w4": _B_in["w4"],
        "gate_w": _w((lambda *s: torch.randn(*s, dtype=torch.bfloat16) * 0.05)(512) * 16.0),
    }

def reference(A_x, A_wqkv, A_w_phi, A_wo, B_x, B_w1, B_w2, B_w3, B_w4, gate_w):
    def _A_ref(x, wqkv, w_phi, wo):
        B, S, D = x.shape
        H = 32; Dh = D // H
        qkv = (lambda x, *d: x.permute(*d))((x @ wqkv).reshape(B, S, 3, H, Dh), 2, 0, 3, 1, 4)
        q, k, v = qkv[0], qkv[1], qkv[2]
        pq = torch.einsum("bhsd,hdf->bhsf", q, w_phi)
        pk = torch.einsum("bhsd,hdf->bhsf", k, w_phi)
        phi_q = torch.concatenate([_softmax(pq, axis=-1), _softmax(-pq, axis=-1)], axis=-1)
        phi_k = torch.concatenate([_softmax(pk, axis=-1), _softmax(-pk, axis=-1)], axis=-1)
        kv = torch.einsum("bhsf,bhsd->bhfd", phi_k, v)
        z  = torch.einsum("bhsf->bhf", phi_k)
        num = torch.einsum("bhqf,bhfd->bhqd", phi_q, kv)
        den = torch.einsum("bhqf,bhf->bhq", phi_q, z)[..., None] + 1e-6
        o = num / den
        return (lambda x, *d: x.permute(*d))(o, 0, 2, 1, 3).reshape(B, S, D) @ wo

    def _B_ref(x, w1, w2, w3, w4):
        B, S, D = x.shape
        h = _gelu(_layernorm(x, axis=-1) @ w1)
        c = D // 4
        g0 = _pad(h[:, :, 0*c:1*c], ((0, 0), (1, 0), (0, 0)))[:, :S, :]
        g1 = _pad(h[:, :, 1*c:2*c], ((0, 0), (0, 1), (0, 0)))[:, 1:, :]
        g2 = _pad(h[:, :, 2*c:3*c], ((0, 0), (2, 0), (0, 0)))[:, :S, :]
        g3 = _pad(h[:, :, 3*c:   ], ((0, 0), (0, 2), (0, 0)))[:, 2:, :]
        hs = torch.concatenate([g0, g1, g2, g3], axis=-1) @ w2
        x1 = x + hs
        h2 = _gelu(_layernorm(x1, axis=-1) @ w3) @ w4
        return x1 + h2

    x = A_x
    g = _sigmoid((x * gate_w).sum(-1, keepdims=True))
    a = _A_ref(x, A_wqkv, A_w_phi, A_wo)
    b = _B_ref(x, B_w1, B_w2, B_w3, B_w4)
    return g * a + (1 - g) * b
```

```python
from dsl import *
H_OFF   = 0x000000
Q_OFF   = 0x200000
KVP_OFF = 0x400000
X1_OFF  = 0x600000
O_OFF   = 0x800000
HID_OFF = 0xA00000
HID_PITCH = 2816
A_OFF   = 0x1000000
G_OFF   = 0x1200000
FLAG_OFF= 0x1210000
EPOCH_OFF=0x1230000
DBG_OFF = 0x1300000
WS_SIZE = 0x1400000
SA=[i*16384 for i in range(4)]
SB=[65536+i*16384 for i in range(4)]
M_SCR=131072
M_MISC=147456
L_GATE=M_MISC
L_WPHI=M_MISC+1024
L_STATS=M_MISC+3072
L_CS=M_MISC+4096
L_RED=M_MISC+5120
LDS_SIZE=163840
S_AX,S_WQKV,S_WPHI,S_WO,S_BX,S_W1,S_W2,S_W3,S_W4,S_GW,S_OUT,S_DBG,S_WS = 8,10,12,14,16,18,20,22,24,26,28,30,32
S_TAG=34; S_WAVE=35; S_X=36; S_J=37; S_RT=38; S_CT=39
SRD_A=40; SRD_B=44; SRD_WS=48; SRD_T=52
S_WR=56; S_WC=57; S_W=58; S_ROT=59; S_SWM=60; S_SWN=61
S_KEEP=62
S_T0=72
def v(i): return f"v{i}"
def vr(i,n): return f"v[{i}:{i+n-1}]"
def s(i): return f"s{i}"
def sr(i,n): return f"s[{i}:{i+n-1}]"
def srd(i): return f"s[{i}:{i+3}]"
class Regs:
    def __init__(self,start,limit): self.next=start; self.limit=limit; self.hi=start
    def alloc(self,n=1,align=1):
        b=(self.next+align-1)//align*align; self.next=b+n
        assert self.next<=self.limit, "out of vgprs"
        self.hi=max(self.hi,self.next); return b
    def mark(self): return self.next
    def release(self,m): self.next=m
def set_srd(p, dst, ptr, nbytes, off=0):
    if off:
        p(f"s_add_u32 {s(dst)}, {s(ptr)}, {off:#x}")
        p(f"s_addc_u32 {s(dst+1)}, {s(ptr+1)}, 0")
    else:
        p(f"s_mov_b32 {s(dst)}, {s(ptr)}")
        p(f"s_mov_b32 {s(dst+1)}, {s(ptr+1)}")
    p(f"s_mov_b32 {s(dst+2)}, {nbytes:#x}")
    p(f"s_mov_b32 {s(dst+3)}, 0x20000")
GELU_C1 = -2*0.7978845608028654*1.4426950408889634
GELU_C2 = GELU_C1*0.044715
LOG2E = 1.4426950408889634
import struct
def f32(x): return "0x%08x"%struct.unpack("<I",struct.pack("<f",x))[0]

import os
STAMP=bool(int(os.environ.get("STAMP","0")))
STAMPS=os.environ.get("STAMPS","").split(",")
def stamp(p,k):
    if not STAMP: return
    if k==0: p(f"s_memrealtime s[80:81]"); return
    if k==1: p(f"s_memtime s[82:83]"); return
    if k in STAMPS:
        i=STAMPS.index(k)+2
        assert i<10
        p(f"s_memtime s[{80+2*i}:{81+2*i}]")
def stamp_dump(p,vt=250):
    if not STAMP: return
    p("s_waitcnt lgkmcnt(0)")
    p(f"s_and_b32 s72, {s(S_WAVE)}, 3")
    p(f"s_cmp_lg_u32 s72, 0")
    p(f"s_cbranch_scc1 L_stampskip_{p.name}")
    p(f"s_lshr_b32 s72, {s(S_WAVE)}, 2")
    p(f"s_lshl_b32 s72, s72, 6")
    p(f"s_lshl_b32 s73, s2, 7")
    p(f"s_add_u32 s72, s72, s73")
    p(f"s_add_u32 s72, s72, {DBG_OFF:#x}")
    p(f"v_mov_b32 v{vt}, 0")
    p("s_mov_b64 exec, 1")
    for k in range(10):
        p(f"v_mov_b32 v{vt+1}, s{80+2*k}")
        p(f"buffer_store_dword v{vt+1}, v{vt}, {srd(SRD_WS)}, s72 offen offset:{4*k}")
        p("s_nop 1")
    p("s_mov_b64 exec, -1")
    p.label(f"L_stampskip_{p.name}")
```

```python
import re

class AsmError(Exception): pass

_reg_re = re.compile(r'^(-|\|)?(abs\()?([vsa])(?:(\d+)|\[(\d+):(\d+)\])\)?\|?$')
def parse_reg(tok):
    t = tok.strip()
    if t.startswith('-'): t = t[1:]
    if t.startswith('abs(') and t.endswith(')'): t = t[4:-1]
    if t.startswith('|') and t.endswith('|'): t = t[1:-1]
    if t.startswith('neg(') and t.endswith(')'): t = t[4:-1]
    if t == 'vcc': return ('s', 106, 107)
    if t == 'vcc_lo': return ('s', 106, 106)
    if t == 'vcc_hi': return ('s', 107, 107)
    if t == 'exec': return ('s', 126, 127)
    if t == 'exec_lo': return ('s', 126, 126)
    if t == 'exec_hi': return ('s', 127, 127)
    if t == 'm0': return ('s', 124, 124)
    m = re.match(r'^([vsa])(\d+)$', t)
    if m: return (m.group(1), int(m.group(2)), int(m.group(2)))
    m = re.match(r'^([vsa])\[(\d+):(\d+)\]$', t)
    if m: return (m.group(1), int(m.group(2)), int(m.group(3)))
    return None

def regs(r):
    if r is None: return set()
    k, lo, hi = r
    return {(k, i) for i in range(lo, hi+1)}

TRANS = ('v_exp_f32','v_log_f32','v_rcp_f32','v_rsq_f32','v_sqrt_f32','v_sin_f32','v_cos_f32','v_rcp_iflag_f32')

class Ins:
    __slots__=('text','op','ops','mods','cls','rd','wr','passes','srcC','dstD','note','isdpp','storedata','wide')
    def __init__(self, text):
        self.text = text
        s = text.split(';')[0].strip()
        self.note = None
        parts = s.split(None, 1)
        self.op = parts[0]
        rest = parts[1] if len(parts) > 1 else ''
        ops=[]; depth=0; cur=''
        for ch in rest:
            if ch in '[(': depth+=1
            if ch in '])': depth-=1
            if ch==',' and depth==0: ops.append(cur.strip()); cur=''
            else: cur+=ch
        if cur.strip(): ops.append(cur.strip())
        mods=''
        if ops:
            last=ops[-1]
            depth=0; idx=-1
            for i,ch in enumerate(last):
                if ch in '[(': depth+=1
                if ch in '])': depth-=1
                if ch==' ' and depth==0: idx=i; break
            if idx>=0:
                mods=last[idx+1:]; ops[-1]=last[:idx]
        self.ops=ops; self.mods=mods
        self.classify()
    def classify(self):
        op=self.op; ops=self.ops; mods=self.mods
        R=[parse_reg(o) for o in ops]
        self.rd=set(); self.wr=set(); self.passes=0; self.srcC=set(); self.dstD=set(); self.isdpp=False; self.storedata=set(); self.wide=False
        b=op
        for suf in ('_e32','_e64','_dpp','_sdwa'):
            if b.endswith(suf): b=b[:-len(suf)]
        if op.endswith('_dpp') or 'row_' in mods or 'quad_perm' in mods: self.isdpp=True
        if op.startswith('v_mfma'):
            self.cls='mfma'
            self.passes = 8 if '32x32' in op else 4
            self.wr=regs(R[0]); self.dstD=set(self.wr)
            self.rd=regs(R[1])|regs(R[2])|regs(R[3]); self.srcC=regs(R[3])
        elif op.startswith('v_'):
            self.cls='trans' if b in TRANS else 'valu'
            if b.startswith('v_cmp'):
                self.wr=regs(R[0]); self.rd=set().union(*[regs(r) for r in R[1:]])
            elif b in ('v_readfirstlane_b32','v_readlane_b32'):
                self.wr=regs(R[0]); self.rd=set().union(*[regs(r) for r in R[1:]])
            elif b.startswith('v_permlane') and 'swap' in b:
                self.wr=regs(R[0])|regs(R[1]); self.rd=set(self.wr)
            elif b in ('v_add_co_u32','v_sub_co_u32','v_addc_co_u32','v_subb_co_u32'):
                self.wr=regs(R[0])|regs(R[1]); self.rd=set().union(*[regs(r) for r in R[2:]])
            else:
                self.wr=regs(R[0]); self.rd=set().union(*[regs(r) for r in R[1:]]) if len(R)>1 else set()
                if b in ('v_fmac_f32','v_dot2c_f32_bf16','v_pk_fmac_f16','v_writelane_b32','v_mac_f32'): self.rd|=self.wr
                if b=='v_cndmask_b32' and len(ops)==3: self.rd|=regs(('s',106,107))
                if self.isdpp or op.endswith('_sdwa'):
                    if 'bound_ctrl' not in mods: self.rd|=self.wr
            self.rd|=regs(('s',126,127))
        elif op.startswith('ds_'):
            if op.startswith('ds_read') or op.startswith('ds_bpermute') or op.startswith('ds_permute') or op.startswith('ds_swizzle'):
                self.cls='ds_read'; self.wr=regs(R[0]); self.rd=set().union(*[regs(r) for r in R[1:]])
            else:
                self.cls='ds_write'; self.rd=set().union(*[regs(r) for r in R])
        elif op.startswith('buffer_load') or op.startswith('global_load'):
            if ' lds' in ' '+mods or op.startswith('global_load_lds'):
                self.cls='dma'; self.rd=set().union(*[regs(r) for r in R])|regs(('s',124,124))
            else:
                self.cls='vload'; self.wr=regs(R[0]); self.rd=set().union(*[regs(r) for r in R[1:]])
        elif op.startswith('buffer_store') or op.startswith('global_store') or op.startswith('buffer_atomic') or op.startswith('global_atomic'):
            self.cls='vstore'; self.rd=set().union(*[regs(r) for r in R])
            if op.startswith('buffer'): self.storedata=regs(R[0])
            else: self.storedata=regs(R[1])
            self.wide = 'x4' in op or 'x3' in op
        elif op in ('buffer_inv','buffer_wbl2'):
            self.cls='vstore'
        elif op=='s_waitcnt': self.cls='wait'
        elif op=='s_nop': self.cls='nop'
        elif op=='s_barrier': self.cls='barrier'
        elif op.startswith('s_cbranch') or op=='s_branch':
            self.cls='branch'
            if 'vcc' in op: self.rd=regs(('s',106,107))
            if 'exec' in op: self.rd=regs(('s',126,127))
        elif op=='s_endpgm': self.cls='end'
        elif op.startswith('s_load') or op.startswith('s_buffer_load') or op in('s_memtime','s_memrealtime'):
            self.cls='smem'; self.wr=regs(R[0]); self.rd=set().union(*[regs(r) for r in R[1:]]) if len(R)>1 else set()
        elif op.startswith('s_'):
            self.cls='salu'
            if op.startswith('s_cmp') or op in('s_setprio','s_sleep','s_bitcmp0_b32','s_bitcmp1_b32'):
                self.rd=set().union(*[regs(r) for r in R]) if R else set()
            else:
                self.wr=regs(R[0]) if R else set(); self.rd=set().union(*[regs(r) for r in R[1:]]) if len(R)>1 else set()
                if 'saveexec' in op: self.wr|=regs(('s',126,127)); self.rd|=regs(('s',126,127))
                if op in ('s_addk_i32','s_mulk_i32'): self.rd|=self.wr
        else:
            raise AsmError('unknown op: '+self.text)
    def nstates(self):
        if self.cls=='nop': return int(self.ops[0],0)+1
        return 1

class Prog:
    def __init__(self, name): self.name=name; self.items=[]
    def __call__(self, text):
        for ln in text.split('\n'):
            s=ln.strip()
            if not s: continue
            if s.startswith(';'): self.items.append(('c',s)); continue
            if s.endswith(':') and ' ' not in s: self.items.append(('l',s)); continue
            self.items.append(('i',Ins(s)))
    def comment(self,s): self.items.append(('c','; '+s))
    def label(self,s): self.items.append(('l',s+':'))

def fix_hazards(prog, check_counters=True, entry_clean=True):
    out=[]
    t=0
    lastw_valu={}
    lastw_trans={}
    lastw_mfma={}
    lastC_read={}
    last_store={}
    lastw_sgpr_valu={}
    lastw_m0=-100
    lastw_exec_salu=-100
    vm=[]
    lg=[]
    errors=[]
    def need(prod_t, ws):
        have = t - prod_t - 1
        return max(0, ws-have)
    def flush_need():
        p=0
        for r,x in lastw_valu.items(): p=max(p,need(x,2))
        for r,x in lastw_trans.items(): p=max(p,need(x,1))
        for r,(x,pp,_) in lastw_mfma.items(): p=max(p,need(x,12 if pp==8 else 8))
        for r,(x,pp) in lastC_read.items(): p=max(p,need(x,7 if pp==8 else 3))
        for r,x in last_store.items(): p=max(p,need(x,2))
        for r,x in lastw_sgpr_valu.items(): p=max(p,need(x,5))
        p=max(p,need(lastw_m0,1))
        return p
    for kind,it in prog.items:
        if kind=='c': out.append('  '+it); continue
        if kind=='l':
            p=flush_need()
            while p>0:
                n=min(p,16); out.append(f'  s_nop {n-1}'); t+=n; p-=n
            out.append(it)
            continue
        ins=it
        pad=0
        c=ins.cls
        vrd={r for r in ins.rd if r[0] in 'va'}; vwr={r for r in ins.wr if r[0] in 'va'}
        srd={r for r in ins.rd if r[0]=='s'}
        isvalu = c in ('valu','trans')
        if c=='mfma':
            for r in ins.rd:
                if r in lastw_valu: pad=max(pad,need(lastw_valu[r],2))
                if r in lastw_mfma:
                    pt,pp,dset=lastw_mfma[r]
                    if r in ins.srcC and not (r in (ins.rd-ins.srcC) and False):
                        isAB = False
                    R=[parse_reg(o) for o in ins.ops]
                    inAB = r in (regs(R[1])|regs(R[2]))
                    if inAB: pad=max(pad,need(pt,12 if pp==8 else 8))
                    if r in ins.srcC:
                        if ins.srcC==dset and pp==ins.passes: pass
                        else: pad=max(pad,need(pt,10 if pp==8 else 6))
            for r in ins.wr:
                if r in lastw_mfma and r not in ins.srcC:
                    pt,pp,dset=lastw_mfma[r]; pad=max(pad,need(pt,12 if pp==8 else 8))
                if r in lastw_valu: pad=max(pad,need(lastw_valu[r],2))
        if isvalu or c in ('ds_read','ds_write','vload','vstore','dma'):
            for r in (vrd|vwr):
                if r in lastw_mfma:
                    pt,pp,dset=lastw_mfma[r]; pad=max(pad,need(pt,12 if pp==8 else 8))
        if isvalu:
            for r in vwr:
                if r in lastC_read:
                    pt,pp=lastC_read[r]; pad=max(pad,need(pt,7 if pp==8 else 3))
                if r in last_store: pad=max(pad,need(last_store[r],2))
            for r in vrd:
                if r in lastw_trans and c!='trans': pad=max(pad,need(lastw_trans[r],1))
            b=ins.op
            if 'permlane' in b or ins.isdpp:
                for r in vrd:
                    if r in lastw_valu: pad=max(pad,need(lastw_valu[r],2))
            if b.startswith('v_readfirstlane') or b.startswith('v_readlane'):
                for r in vrd:
                    if r in lastw_valu: pad=max(pad,need(lastw_valu[r],1))
            for r in srd:
                if r in lastw_sgpr_valu: pad=max(pad,need(lastw_sgpr_valu[r],2 if not b.startswith('v_readlane') else 4))
        if c in ('ds_read','vload') :
            for r in vwr:
                if r in lastC_read:
                    pt,pp=lastC_read[r]; pad=max(pad,need(pt,7 if pp==8 else 3))
                if r in last_store: pad=max(pad,need(last_store[r],1))
        if c in ('ds_read','ds_write','vload','vstore','dma'):
            for r in vrd:
                if r in lastw_trans: pad=max(pad,need(lastw_trans[r],1))
        if c in ('vload','vstore','dma'):
            for r in srd:
                if r in lastw_sgpr_valu: pad=max(pad,need(lastw_sgpr_valu[r],5))
        if c=='dma': pad=max(pad,need(lastw_m0,1))
        if c in ('salu','branch','smem'):
            for r in srd:
                if r in lastw_sgpr_valu: pad=max(pad,need(lastw_sgpr_valu[r],4))
        if c=='branch': pad=max(pad,flush_need())
        if check_counters:
            touched=ins.rd|ins.wr
            if c!='wait':
                for q in vm:
                    if q & touched: errors.append(f'{prog.name}: vm pending reg used by: {ins.text}')
                for q,_ in lg:
                    if q & touched: errors.append(f'{prog.name}: lgkm pending reg used by: {ins.text}')
        if pad>0:
            while pad>0:
                n=min(pad,16); out.append(f'  s_nop {n-1}'); t+=n; pad-=n
        out.append('  '+ins.text)
        if c=='wait':
            txt=ins.text
            m=re.search(r'vmcnt\((\d+)\)',txt)
            if m:
                n=int(m.group(1))
                while len(vm)>n: vm.pop(0)
            m=re.search(r'lgkmcnt\((\d+)\)',txt)
            if m:
                n=int(m.group(1))
                if any(s for _,s in lg) and n!=0: errors.append(f'{prog.name}: lgkmcnt({n}) with smem outstanding')
                while len(lg)>n: lg.pop(0)
        if c in ('vload','vstore','dma'):
            vm.append(set(ins.wr) if c=='vload' else set())
            if len(vm)>63: errors.append(f'{prog.name}: >63 vm ops outstanding at {ins.text}')
        if c in ('ds_read','ds_write'):
            lg.append((set(ins.wr),False))
        if c=='smem' and ins.op not in ('s_memtime','s_memrealtime'):
            lg.append((set(ins.wr),True))
        if isvalu:
            for r in ins.wr:
                if r[0] in 'va':
                    lastw_valu[r]=t; lastw_mfma.pop(r,None)
                    if c=='trans': lastw_trans[r]=t
                    else: lastw_trans.pop(r,None)
                else: lastw_sgpr_valu[r]=t
        if c=='mfma':
            for r in ins.wr:
                lastw_mfma[r]=(t,ins.passes,ins.dstD); lastw_valu.pop(r,None); lastw_trans.pop(r,None)
            for r in ins.srcC: lastC_read[r]=(t,ins.passes)
        if c in('ds_read','vload'):
            for r in ins.wr:
                lastw_valu.pop(r,None); lastw_trans.pop(r,None); lastw_mfma.pop(r,None)
        if c=='vstore' and ins.wide:
            for r in ins.storedata: last_store[r]=t
        if c=='salu':
            for r in ins.wr:
                lastw_sgpr_valu.pop(r,None)
                if r==('s',124): lastw_m0=t
        t+=ins.nstates()
    return out, errors
```

```python
from g64 import *
FL=lambda ph: FLAG_OFF+ph*0x8000
STARTED=FLAG_OFF+0x18000

def tile24_wg(p,dst,r64,c,t):
    p(f"v_lshlrev_b32 {v(dst)}, 2, {v(c)}")
    p(f"v_and_b32 {v(t)}, 3, {v(r64)}")
    p(f"v_or_b32 {v(dst)}, {v(dst)}, {v(t)}")
    p(f"v_lshlrev_b32 {v(dst)}, 3, {v(dst)}")
    p(f"v_lshrrev_b32 {v(t)}, 2, {v(r64)}")
    p(f"v_add_u32 {v(dst)}, {v(dst)}, {v(t)}")
def tile3_wg(p,dst,rt,ct,t):
    p(f"v_and_b32 {v(dst)}, 3, {v(ct)}")
    p(f"v_lshlrev_b32 {v(dst)}, 3, {v(dst)}")
    p(f"v_and_b32 {v(t)}, 7, {v(rt)}")
    p(f"v_add_u32 {v(dst)}, {v(dst)}, {v(t)}")
    p(f"v_lshlrev_b32 {v(dst)}, 3, {v(dst)}")
    p(f"v_lshrrev_b32 {v(t)}, 2, {v(ct)}")
    p(f"v_lshlrev_b32 {v(t)}, 1, {v(t)}")
    p(f"v_add_u32 {v(dst)}, {v(dst)}, {v(t)}")
    p(f"v_lshrrev_b32 {v(t)}, 3, {v(rt)}")
    p(f"v_add_u32 {v(dst)}, {v(dst)}, {v(t)}")

def push_addr(p,dst,wg,slot):
    p(f"v_lshlrev_b32 {v(dst)}, 7, {v(wg)}")
    p(f"v_lshlrev_b32 {v(slot)}, 2, {v(slot)}")
    p(f"v_add_u32 {v(dst)}, {v(dst)}, {v(slot)}")

def push_store(p,addr,d,phase,execmask_sgpr=None,execlit=None):
    p(f"v_mov_b32 {v(d)}, {s(S_TAG)}")
    p(f"s_mov_b32 {s(S_T0)}, {FL(phase):#x}")
    if execmask_sgpr is not None: p(f"s_mov_b64 exec, {sr(execmask_sgpr,2)}")
    else:
        p(f"s_mov_b32 exec_lo, {execlit:#x}"); p("s_mov_b32 exec_hi, 0")
    p(f"buffer_store_dword {v(d)}, {v(addr)}, {srd(SRD_WS)}, {s(S_T0)} offen sc1")
    p("s_mov_b64 exec, -1")

def push1_prepare(p,R,kind,PA):
    m=R.mark(); a=R.alloc(); b=R.alloc(); t=R.alloc(); u=R.alloc()
    M=S_KEEP+8
    if kind=='KV':
        p(f"s_sub_u32 {s(S_T0)}, {s(S_CT)}, 4")
        p(f"v_lshlrev_b32 {v(a)}, 3, v0")
        p(f"v_add_u32 {v(a)}, {s(S_T0)}, {v(a)}")
        p(f"v_mov_b32 {v(b)}, {s(S_RT)}")
        p(f"s_mov_b32 {s(M)}, -1"); p(f"s_mov_b32 {s(M+1)}, 0")
    elif kind=='Q':
        p(f"s_lshl_b32 {s(S_T0)}, {s(S_CT)}, 3")
        p(f"v_and_b32 {v(t)}, 7, v0")
        p(f"v_add_u32 {v(t)}, {s(S_T0)}, {v(t)}")
        p(f"s_lshr_b32 {s(S_T0)}, {s(S_RT)}, 1")
        p(f"v_mov_b32 {v(u)}, {s(S_T0)}")
        tile24_wg(p,a,t,u,b)
        p(f"s_and_b32 {s(S_T0)}, {s(S_RT)}, 1")
        p(f"s_add_u32 {s(S_T0)}, {s(S_T0)}, 16")
        p(f"v_mov_b32 {v(b)}, {s(S_T0)}")
        p(f"s_mov_b32 {s(M)}, 0xff"); p(f"s_mov_b32 {s(M+1)}, 0")
    else:
        p(f"s_lshl_b32 {s(S_T0)}, {s(S_RT)}, 1")
        p(f"s_sub_u32 {s(S_T0)}, {s(S_T0)}, 1")
        p(f"v_bfe_u32 {v(t)}, v0, 3, 2")
        p(f"v_add_u32 {v(t)}, {s(S_T0)}, {v(t)}")
        p(f"v_and_b32 {v(u)}, 7, v0")
        tile24_wg(p,a,t,u,b)
        p(f"v_lshrrev_b32 {v(u)}, 1, {v(t)}")
        p(f"s_sub_u32 {s(S_T0)}, {s(S_CT)}, 12")
        p(f"s_add_u32 {s(S_T0+1)}, {s(S_T0)}, 22")
        p(f"s_add_u32 {s(S_T0)}, {s(S_T0)}, 18")
        p(f"v_mov_b32 {v(b)}, {s(S_T0+1)}")
        p(f"v_mov_b32 {v(PA)}, {s(S_T0)}")
        p(f"v_cmp_eq_u32 vcc, {s(S_RT)}, {v(u)}")
        p(f"v_cndmask_b32 {v(b)}, {v(b)}, {v(PA)}, vcc")
        p(f"v_cmp_gt_u32 vcc, 32, {v(t)}")
        p(f"s_and_b32 {s(M)}, vcc_lo, -1"); p(f"s_mov_b32 {s(M+1)}, 0")
    push_addr(p,PA,a,b)
    R.release(m)

def push2_prepare(p,R,PA,R64,C8):
    m=R.mark(); a=R.alloc(); b=R.alloc(); t=R.alloc(); rt=R.alloc(); ct=R.alloc()
    M=S_KEEP+8
    p(f"s_lshr_b32 {s(S_T0)}, {s(R64)}, 1")
    p(f"v_mov_b32 {v(rt)}, {s(S_T0)}")
    p(f"v_mov_b32 {v(ct)}, v0")
    p(f"s_and_b32 {s(S_T0)}, {s(R64)}, 1"); p(f"s_lshl_b32 {s(S_T0)}, {s(S_T0)}, 3"); p(f"s_add_u32 {s(S_T0)}, {s(S_T0)}, {s(C8)}")
    p(f"v_mov_b32 {v(b)}, {s(S_T0)}")
    p(f"v_subrev_u32 {v(t)}, 11, v0")
    p(f"v_cmp_gt_u32 vcc, 8, {v(t)}")
    p(f"v_lshrrev_b32 {v(a)}, 2, {v(t)}")
    p(f"s_lshl_b32 {s(S_T0)}, {s(C8)}, 1")
    p(f"v_add_u32 {v(a)}, {s(S_T0)}, {v(a)}")
    p(f"v_cndmask_b32 {v(rt)}, {v(rt)}, {v(a)}, vcc")
    p(f"v_and_b32 {v(a)}, 3, {v(t)}")
    p(f"v_add_u32 {v(a)}, 11, {v(a)}")
    p(f"v_cndmask_b32 {v(ct)}, {v(ct)}, {v(a)}, vcc")
    p(f"v_mov_b32 {v(a)}, {s(R64)}")
    p(f"v_cndmask_b32 {v(b)}, {v(b)}, {v(a)}, vcc")
    tile3_wg(p,a,rt,ct,t)
    p(f"s_mov_b32 {s(M)}, 0x7ffff"); p(f"s_mov_b32 {s(M+1)}, 0")
    push_addr(p,PA,a,b)
    R.release(m)

def push3_prepare(p,R,kind,PA,RT,CT):
    m=R.mark(); a=R.alloc(); b=R.alloc(); t=R.alloc(); r64=R.alloc(); c=R.alloc()
    M=S_KEEP+8
    p(f"s_lshl_b32 {s(S_T0)}, {s(RT)}, 1")
    if kind=='W3':
        p(f"v_bfe_u32 {v(r64)}, v0, 3, 1"); p(f"v_add_u32 {v(r64)}, {s(S_T0)}, {v(r64)}")
        p(f"v_and_b32 {v(c)}, 7, v0")
        p(f"v_mov_b32 {v(b)}, {s(CT)}")
        p(f"s_mov_b32 {s(M)}, 0xffff")
    else:
        p(f"v_bfe_u32 {v(r64)}, v0, 1, 1"); p(f"v_add_u32 {v(r64)}, {s(S_T0)}, {v(r64)}")
        p(f"s_sub_u32 {s(S_T0)}, {s(CT)}, 11"); p(f"s_lshl_b32 {s(S_T0)}, {s(S_T0)}, 1")
        p(f"v_and_b32 {v(c)}, 1, v0"); p(f"v_add_u32 {v(c)}, {s(S_T0)}, {v(c)}")
        p(f"v_mov_b32 {v(b)}, 11")
        p(f"s_mov_b32 {s(M)}, 0xf")
    p(f"s_mov_b32 {s(M+1)}, 0")
    tile24_wg(p,a,r64,c,t)
    push_addr(p,PA,a,b)
    R.release(m)

def do_push(p,R,PA,phase,name,started=False):
    m=R.mark(); d=R.alloc()
    p(f"s_cmp_lg_u32 {s(S_WAVE)}, 0")
    p(f"s_cbranch_scc1 L_nopush_{name}")
    push_store(p,PA,d,phase,execmask_sgpr=S_KEEP+8)
    if started:
        p(f"s_lshl_b32 {s(S_T0)}, s2, 2"); p(f"s_add_u32 {s(S_T0)}, {s(S_T0)}, {STARTED:#x}")
        p(f"v_mov_b32 {v(PA)}, 0")
        p("s_mov_b64 exec, 1")
        p(f"buffer_store_dword {v(d)}, {v(PA)}, {srd(SRD_WS)}, {s(S_T0)} offen sc1")
        p("s_mov_b64 exec, -1")
    p.label(f"L_nopush_{name}")
    R.release(m)

def poll_own(p,R,name,phase,mask_sgpr,sleep=0):
    m=R.mark(); a=R.alloc(1); d=R.alloc(1)
    p(f"s_cmp_lg_u32 {s(S_WAVE)}, 0")
    p(f"s_cbranch_scc1 L_poll_{name}_done")
    p(f"v_and_b32 {v(a)}, 31, v0")
    p(f"v_lshlrev_b32 {v(a)}, 2, {v(a)}")
    p(f"s_lshl_b32 {s(S_T0)}, s2, 7")
    p(f"s_add_u32 {s(S_T0)}, {s(S_T0)}, {FL(phase):#x}")
    p(f"s_mov_b32 {s(S_T0+1)}, 0x40000")
    p.label(f"L_poll_{name}")
    p(f"buffer_load_dword {v(d)}, {v(a)}, {srd(SRD_WS)}, {s(S_T0)} offen sc1")
    p("s_waitcnt vmcnt(0)")
    p(f"v_cmp_ne_u32 vcc, {s(S_TAG)}, {v(d)}")
    p(f"s_and_b32 {s(S_T0+2)}, vcc_lo, {s(mask_sgpr)}")
    p(f"s_cbranch_scc0 L_poll_{name}_done")
    if sleep: p(f"s_sleep {sleep}")
    p(f"s_sub_u32 {s(S_T0+1)}, {s(S_T0+1)}, 1")
    p(f"s_cmp_lg_u32 {s(S_T0+1)}, 0")
    p(f"s_cbranch_scc1 L_poll_{name}")
    p.label(f"L_poll_{name}_done")
    R.release(m)
```

```python
from phase1c import *

S_R64=S_KEEP+3; S_C8=S_KEEP+4

class G64:
    D=3
    def __init__(self,R):
        self.vA=R.alloc(8); self.vB=R.alloc(1)
        self.vA2=R.alloc(8); self.vB2=R.alloc(1)
        self.fx=[R.alloc(4,4) for _ in range(4)]
        self.fw=[R.alloc(4,4) for _ in range(4)]
        self.acc=R.alloc(16,4)
    def setup(self,p,R):
        m=R.mark(); t0=R.alloc(); t1=R.alloc(); t2=R.alloc()
        p(f"v_lshrrev_b32 {v(t0)}, 5, v0")
        p(f"v_and_b32 {v(t1)}, 15, v0")
        p(f"v_xor_b32 {v(t0)}, {v(t0)}, {v(t1)}")
        p(f"v_lshlrev_b32 {v(t0)}, 4, {v(t0)}")
        p(f"v_and_b32 {v(t1)}, 31, v0")
        p(f"v_lshlrev_b32 {v(t1)}, 8, {v(t1)}")
        p(f"s_lshl_b32 {s(S_T0)}, {s(S_WR)}, 13")
        p(f"v_add_u32 {v(t1)}, {s(S_T0)}, {v(t1)}")
        for ks in range(8):
            p(f"v_xor_b32 {v(t2)}, {ks<<5}, {v(t0)}")
            p(f"v_add_u32 {v(self.vA+ks)}, {v(t1)}, {v(t2)}")
            p(f"v_add_u32 {v(self.vA2+ks)}, 0x10000, {v(self.vA+ks)}")
        p(f"v_lshrrev_b32 {v(t0)}, 5, v0")
        p(f"v_lshlrev_b32 {v(t0)}, 3, {v(t0)}")
        p(f"v_bfe_u32 {v(t1)}, v0, 2, 2")
        p(f"v_add_u32 {v(t0)}, {v(t0)}, {v(t1)}")
        p(f"v_lshlrev_b32 {v(t0)}, 7, {v(t0)}")
        p(f"v_and_b32 {v(t1)}, 1, v0")
        p(f"v_lshlrev_b32 {v(t1)}, 3, {v(t1)}")
        p(f"v_add_u32 {v(t0)}, {v(t0)}, {v(t1)}")
        p(f"v_bfe_u32 {v(t1)}, v0, 4, 1")
        p(f"v_lshlrev_b32 {v(t1)}, 1, {v(t1)}")
        p(f"v_bfe_u32 {v(t2)}, v0, 1, 1")
        p(f"v_add_u32 {v(t1)}, {v(t1)}, {v(t2)}")
        p(f"s_lshl_b32 {s(S_T0)}, {s(S_WC)}, 2")
        p(f"v_add_u32 {v(t1)}, {s(S_T0)}, {v(t1)}")
        p(f"v_bfe_u32 {v(t2)}, v0, 3, 1")
        p(f"v_lshlrev_b32 {v(t2)}, 2, {v(t2)}")
        p(f"v_xor_b32 {v(t1)}, {v(t1)}, {v(t2)}")
        p(f"v_lshlrev_b32 {v(t1)}, 4, {v(t1)}")
        p(f"v_add_u32 {v(self.vB)}, {v(t0)}, {v(t1)}")
        p(f"v_add_u32 {v(self.vB2)}, 0x10000, {v(self.vB)}")
        R.release(m)
    def _addr(self,base,lo,hi):
        return (lo,base) if base<65536 else (hi,base-65536)
    def reads(self,n,steps,slotsA,slotsB):
        sl,ks=steps[n]; st=n%4
        ra,oa=self._addr(slotsA[sl],self.vA,self.vA2); rb,ob=self._addr(slotsB[sl],self.vB,self.vB2)
        assert oa+16384<=65536 and ob+16384<=65536
        return [(f"ds_read_b64_tr_b16 {vr(self.fw[st],2)}, {v(rb)} offset:{ob+ks*2048}",n),
                (f"ds_read_b64_tr_b16 {vr(self.fw[st]+2,2)}, {v(rb)} offset:{ob+ks*2048+512}",n),
                (f"ds_read_b128 {vr(self.fx[st],4)}, {v(ra+ks)} offset:{oa}",n)]
    def main(self,p,ksteps,slotsA,slotsB,first_barrier=True,zero_init=True):
        steps=[(sl,ks) for sl,k in enumerate(ksteps) for ks in range(k)]
        N=len(steps); D=self.D
        q=LgkQ(p)
        if first_barrier: p("s_barrier")
        nxt=0
        def issue_upto(lim):
            nonlocal nxt
            while nxt<min(lim,N):
                if steps[nxt][1]==0 and steps[nxt][0]>0:
                    q.drain(); p("s_barrier")
                for t,tag in self.reads(nxt,steps,slotsA,slotsB): q.issue(t,tag)
                nxt+=1
        issue_upto(D)
        for n in range(N):
            st=n%4
            q.need({n})
            c="0" if (n==0 and zero_init) else vr(self.acc,16)
            p(f"v_mfma_f32_32x32x16_bf16 {vr(self.acc,16)}, {vr(self.fw[st],4)}, {vr(self.fx[st],4)}, {c}")
            issue_upto(n+1+D)
        q.drain()

class Xpose64:
    def __init__(self,R): self.vW=R.alloc(4); self.vRd=R.alloc(1)
    def setup(self,p,R,base_sgpr_expr=None):
        m=R.mark(); t0=R.alloc(); t1=R.alloc()
        p(f"s_lshl_b32 {s(S_T0)}, {s(S_WAVE)}, 12")
        p(f"s_add_u32 {s(S_T0)}, {s(S_T0)}, {M_SCR}")
        p(f"v_and_b32 {v(t0)}, 31, v0")
        p(f"v_lshlrev_b32 {v(t0)}, 6, {v(t0)}")
        p(f"v_lshrrev_b32 {v(t1)}, 5, v0")
        p(f"v_lshlrev_b32 {v(t1)}, 3, {v(t1)}")
        p(f"v_add_u32 {v(t0)}, {v(t0)}, {v(t1)}")
        p(f"v_add_u32 {v(t0)}, {s(S_T0)}, {v(t0)}")
        p(f"v_bfe_u32 {v(t1)}, v0, 1, 2")
        p(f"v_lshlrev_b32 {v(t1)}, 4, {v(t1)}")
        p(f"v_add_u32 {v(t0)}, {v(t0)}, {v(t1)}")
        for j in range(4): p(f"v_xor_b32 {v(self.vW+j)}, {j<<4}, {v(t0)}")
        p(f"v_lshrrev_b32 {v(t0)}, 2, v0")
        p(f"v_lshlrev_b32 {v(t0)}, 6, {v(t0)}")
        p(f"v_bfe_u32 {v(t1)}, v0, 3, 2")
        p(f"v_and_b32 {v(self.vRd)}, 3, v0")
        p(f"v_xor_b32 {v(t1)}, {v(t1)}, {v(self.vRd)}")
        p(f"v_lshlrev_b32 {v(t1)}, 4, {v(t1)}")
        p(f"v_add_u32 {v(t0)}, {v(t0)}, {v(t1)}")
        p(f"v_add_u32 {v(self.vRd)}, {s(S_T0)}, {v(t0)}")
        R.release(m)
    def roundtrip(self,p,acc,pk,dst):
        for k in range(8): p(f"v_cvt_pk_bf16_f32 {v(pk+k)}, {v(acc+2*k)}, {v(acc+2*k+1)}")
        for j in range(4): p(f"ds_write_b64 {v(self.vW+j)}, {vr(pk+2*j,2)}")
        for t in range(2): p(f"ds_read_b128 {vr(dst+4*t,4)}, {v(self.vRd)} offset:{t*1024}")

def tile64_voff(p,R,dst):
    m=R.mark(); t=R.alloc()
    p(f"v_lshrrev_b32 {v(t)}, 2, v0")
    p(f"v_lshlrev_b32 {v(t)}, 10, {v(t)}")
    p(f"v_and_b32 {v(dst)}, 3, v0")
    p(f"v_lshlrev_b32 {v(dst)}, 4, {v(dst)}")
    p(f"v_add_u32 {v(dst)}, {v(dst)}, {v(t)}")
    R.release(m)

def tile64_soff(p,dst):
    p(f"s_lshl_b32 {s(dst)}, {s(S_R64)}, 1")
    p(f"s_add_u32 {s(dst)}, {s(dst)}, {s(S_WR)}")
    p(f"s_lshl_b32 {s(dst)}, {s(dst)}, 15")
    p(f"s_lshl_b32 {s(S_T0+7)}, {s(S_C8)}, 1")
    p(f"s_add_u32 {s(S_T0+7)}, {s(S_T0+7)}, {s(S_WC)}")
    p(f"s_lshl_b32 {s(S_T0+7)}, {s(S_T0+7)}, 6")
    p(f"s_add_u32 {s(dst)}, {s(dst)}, {s(S_T0+7)}")

def unpack8(p,dst,src):
    for k in range(4):
        p(f"v_lshlrev_b32 {v(dst+2*k)}, 16, {v(src+k)}")
        p(f"v_and_b32 {v(dst+2*k+1)}, 0xffff0000, {v(src+k)}")

def poll(p,R,name,vidx_fn,phase):
    m=R.mark(); a=R.alloc(1); d=R.alloc(1)
    p(f"s_cmp_lg_u32 {s(S_WAVE)}, 0")
    p(f"s_cbranch_scc1 L_poll_{name}_done")
    vidx_fn(p,a)
    p(f"v_lshlrev_b32 {v(a)}, 2, {v(a)}")
    p(f"s_mov_b32 {s(S_T0)}, {FLAG_OFF+phase*0x400:#x}")
    p(f"s_mov_b32 {s(S_T0+1)}, 0x40000")
    p.label(f"L_poll_{name}")
    p(f"buffer_load_dword {v(d)}, {v(a)}, {srd(SRD_WS)}, {s(S_T0)} offen sc1")
    p("s_waitcnt vmcnt(0)")
    p(f"v_cmp_ne_u32 vcc, {s(S_TAG)}, {v(d)}")
    p(f"s_cbranch_vccz L_poll_{name}_done")
    p(f"s_sub_u32 {s(S_T0+1)}, {s(S_T0+1)}, 1")
    p(f"s_cmp_lg_u32 {s(S_T0+1)}, 0")
    p(f"s_cbranch_scc1 L_poll_{name}")
    p.label(f"L_poll_{name}_done")
    R.release(m)
```

```python
from common import *

class LgkQ:
    def __init__(self,p): self.p=p; self.q=[]
    def issue(self,text,tag): self.p(text); self.q.append(tag)
    def need(self,tags):
        idx=[i for i,t in enumerate(self.q) if t in tags]
        if not idx: return
        last=max(idx); n=len(self.q)-1-last
        assert n<=15
        self.p(f"s_waitcnt lgkmcnt({n})"); self.q=self.q[last+1:]
    def drain(self):
        if self.q: self.p("s_waitcnt lgkmcnt(0)"); self.q=[]

class G128:
    def __init__(self,R):
        self.vA=R.alloc(8); self.vB=R.alloc(2)
        self.fx=[[R.alloc(4,4),R.alloc(4,4)],[R.alloc(4,4),R.alloc(4,4)]]
        self.fw=[[R.alloc(4,4),R.alloc(4,4)],[R.alloc(4,4),R.alloc(4,4)]]
        self.acc=R.alloc(64,4)
        self.xacc=R.alloc(16,4)
        self.fe=[R.alloc(4,4),R.alloc(4,4)]
        self.vE=R.alloc(1)
    def A(self,mb,nb): return self.acc+16*(2*mb+nb)
    def setup(self,p,R):
        m=R.mark(); t0=R.alloc(); t1=R.alloc(); t2=R.alloc()
        p(f"v_lshrrev_b32 {v(t0)}, 5, v0")
        p(f"v_bfe_u32 {v(t1)}, v0, 1, 3")
        p(f"v_xor_b32 {v(t0)}, {v(t0)}, {v(t1)}")
        p(f"v_lshlrev_b32 {v(t0)}, 4, {v(t0)}")
        p(f"v_and_b32 {v(t1)}, 31, v0")
        p(f"v_lshlrev_b32 {v(t1)}, 7, {v(t1)}")
        p(f"s_lshl_b32 {s(S_T0)}, {s(S_WR)}, 13")
        p(f"v_add_u32 {v(t1)}, {s(S_T0)}, {v(t1)}")
        p(f"s_lshl_b32 {s(S_T0)}, {s(S_SWM)}, 12")
        p(f"s_xor_b32 {s(S_T0+1)}, {s(S_T0)}, 4096")
        for ks in range(4):
            p(f"v_xor_b32 {v(t2)}, {ks<<5}, {v(t0)}")
            p(f"v_add_u32 {v(t2)}, {v(t1)}, {v(t2)}")
            p(f"v_add_u32 {v(self.vA+ks)}, {s(S_T0)}, {v(t2)}")
            p(f"v_add_u32 {v(self.vA+4+ks)}, {s(S_T0+1)}, {v(t2)}")
        p(f"v_lshrrev_b32 {v(t0)}, 5, v0")
        p(f"v_lshlrev_b32 {v(t0)}, 3, {v(t0)}")
        p(f"v_bfe_u32 {v(t1)}, v0, 2, 2")
        p(f"v_add_u32 {v(t0)}, {v(t0)}, {v(t1)}")
        p(f"v_lshlrev_b32 {v(t0)}, 8, {v(t0)}")
        p(f"v_and_b32 {v(t2)}, 1, v0")
        p(f"v_lshlrev_b32 {v(t2)}, 3, {v(t2)}")
        p(f"v_add_u32 {v(t0)}, {v(t0)}, {v(t2)}")
        p(f"v_add_u32 {v(t0)}, 0x10000, {v(t0)}")
        p(f"v_lshlrev_b32 {v(t1)}, 2, {v(t1)}")
        p(f"v_bfe_u32 {v(t2)}, v0, 4, 1")
        p(f"v_lshlrev_b32 {v(t2)}, 1, {v(t2)}")
        u=R.alloc()
        p(f"v_bfe_u32 {v(u)}, v0, 1, 1")
        p(f"v_add_u32 {v(t2)}, {v(t2)}, {v(u)}")
        p(f"s_lshl_b32 {s(S_T0)}, {s(S_WC)}, 3")
        p(f"v_add_u32 {v(t2)}, {s(S_T0)}, {v(t2)}")
        p(f"s_lshl_b32 {s(S_T0)}, {s(S_SWN)}, 2")
        p(f"s_xor_b32 {s(S_T0+1)}, {s(S_T0)}, 4")
        for nb in range(2):
            p(f"v_add_u32 {v(u)}, {s(S_T0+nb)}, {v(t2)}")
            p(f"v_xor_b32 {v(u)}, {v(u)}, {v(t1)}")
            p(f"v_lshlrev_b32 {v(u)}, 4, {v(u)}")
            p(f"v_add_u32 {v(self.vB+nb)}, {v(t0)}, {v(u)}")
        R.release(m)
    def reads(self,n,slotsA,slotsB,extra,gate_off=None):
        i,ks=divmod(n,4); st=n%2
        a=slotsA[i]; assert 0<=a and a+4096+4096<=65536 or True
        b=slotsB[i]-65536
        L=[]
        def tr(dst,nb,j): return (f"ds_read_b64_tr_b16 {vr(dst,2)}, {v(self.vB+nb)} offset:{b+ks*4096+j*1024}")
        L.append((tr(self.fw[st][0],0,0),('w0',n)))
        L.append((tr(self.fw[st][0]+2,0,1),('w0',n)))
        L.append((f"ds_read_b128 {vr(self.fx[st][0],4)}, {v(self.vA+ks)} offset:{a}",('x0',n)))
        L.append((tr(self.fw[st][1],1,0),('w1',n)))
        L.append((tr(self.fw[st][1]+2,1,1),('w1',n)))
        L.append((f"ds_read_b128 {vr(self.fx[st][1],4)}, {v(self.vA+4+ks)} offset:{a}",('x1',n)))
        if extra=='gate':
            L.append((f"ds_read_b128 {vr(self.fe[st],4)}, {v(self.vE)} offset:{ks*32}",('e',n)))
        return L
    def main(self,p,slotsA,slotsB,orient,extra=None,role=0,nst=8,stage_hook=None):
        q=LgkQ(p)
        N=nst*4
        p("s_barrier")
        stamp(p,"m1_first")
        if stage_hook: stage_hook(0)
        for t,tag in self.reads(0,slotsA,slotsB,extra): q.issue(t,tag)
        for n in range(N):
            i,ks=divmod(n,4); st=n%2
            nxt=self.reads(n+1,slotsA,slotsB,extra) if n+1<N else []
            if ks==3 and n+1<N:
                q.drain(); p("s_barrier")
                if stage_hook: stage_hook(i+1)
            def mf(mb,nb):
                D=self.A(mb,nb); x=self.fx[st][mb]; w=self.fw[st][nb]
                q.need({('x%d'%mb,n),('w%d'%nb,n)})
                c = "0" if n==0 else vr(D,16)
                if orient[nb]=='T': p(f"v_mfma_f32_32x32x16_bf16 {vr(D,16)}, {vr(w,4)}, {vr(x,4)}, {c}")
                else: p(f"v_mfma_f32_32x32x16_bf16 {vr(D,16)}, {vr(x,4)}, {vr(w,4)}, {c}")
            def rd(k):
                for _ in range(k):
                    if nxt: t,tag=nxt.pop(0); q.issue(t,tag)
            mf(0,0); rd(2); mf(0,1); rd(2); mf(1,0); rd(2); mf(1,1)
            if extra:
                c = "0" if n==0 else vr(self.xacc,16)
                if extra=='gate':
                    q.need({('e',n)})
                    p(f"v_mfma_f32_32x32x16_bf16 {vr(self.xacc,16)}, {vr(self.fe[st],4)}, {vr(self.fx[st][role],4)}, {c}")
                else:
                    p(f"v_mfma_f32_32x32x16_bf16 {vr(self.xacc,16)}, {vr(self.fw[st][role],4)}, {vr(self.fe[0],4)}, {c}")
            rd(8)
        q.drain()
        stamp(p,"m1_end")

class Xpose128:
    def __init__(self,R):
        self.vW=R.alloc(8); self.vRd=R.alloc(1)
    def setup(self,p,R):
        m=R.mark(); t0=R.alloc(); t1=R.alloc()
        p(f"s_lshl_b32 {s(S_T0)}, {s(S_WAVE)}, 12")
        p(f"s_add_u32 {s(S_T0)}, {s(S_T0)}, {M_SCR}")
        p(f"v_and_b32 {v(t0)}, 31, v0")
        p(f"v_lshlrev_b32 {v(t0)}, 7, {v(t0)}")
        p(f"v_lshrrev_b32 {v(t1)}, 5, v0")
        p(f"v_lshlrev_b32 {v(t1)}, 3, {v(t1)}")
        p(f"v_add_u32 {v(t0)}, {v(t0)}, {v(t1)}")
        p(f"v_add_u32 {v(t0)}, {s(S_T0)}, {v(t0)}")
        p(f"v_and_b32 {v(t1)}, 7, v0")
        p(f"v_lshlrev_b32 {v(t1)}, 4, {v(t1)}")
        p(f"v_add_u32 {v(t0)}, {v(t0)}, {v(t1)}")
        p(f"s_lshl_b32 {s(S_T0+1)}, {s(S_SWN)}, 6")
        p(f"v_xor_b32 {v(t0)}, {s(S_T0+1)}, {v(t0)}")
        for nb in range(2):
            for j in range(4):
                p(f"v_xor_b32 {v(self.vW+nb*4+j)}, {(nb<<6)|(j<<4)}, {v(t0)}")
        p(f"v_lshrrev_b32 {v(t0)}, 3, v0")
        p(f"v_and_b32 {v(t1)}, 7, v0")
        p(f"v_xor_b32 {v(t1)}, {v(t1)}, {v(t0)}")
        p(f"v_lshlrev_b32 {v(t1)}, 4, {v(t1)}")
        p(f"v_lshlrev_b32 {v(t0)}, 7, {v(t0)}")
        p(f"v_add_u32 {v(t0)}, {v(t0)}, {v(t1)}")
        p(f"v_add_u32 {v(self.vRd)}, {s(S_T0)}, {v(t0)}")
        R.release(m)
    def write(self,p,nb,pk):
        for j in range(4):
            p(f"ds_write_b64 {v(self.vW+nb*4+j)}, {vr(pk+2*j,2)}")

def pack16(p,dst,src):
    for k in range(8): p(f"v_cvt_pk_bf16_f32 {v(dst+k)}, {v(src+2*k)}, {v(src+2*k+1)}")

def gelu_pairs(p,X,n,T,KC):
    P=range(0,n,2)
    for k in P: p(f"v_pk_mul_f32 {vr(T+k,2)}, {vr(X+k,2)}, {vr(X+k,2)}")
    for k in P: p(f"v_pk_fma_f32 {vr(T+k,2)}, {vr(T+k,2)}, {vr(KC,2)}, {vr(KC,2)} op_sel:[0,0,1] op_sel_hi:[1,0,1]")
    for k in P: p(f"v_pk_mul_f32 {vr(T+k,2)}, {vr(T+k,2)}, {vr(X+k,2)}")
    for k in range(n): p(f"v_exp_f32 {v(T+k)}, {v(T+k)}")
    for k in P: p(f"v_pk_add_f32 {vr(T+k,2)}, {vr(T+k,2)}, {vr(KC+2,2)}")
    for k in range(n): p(f"v_rcp_f32 {v(T+k)}, {v(T+k)}")
    for k in P: p(f"v_pk_mul_f32 {vr(X+k,2)}, {vr(X+k,2)}, {vr(T+k,2)}")

def gelu_consts(p,KC):
    p(f"v_mov_b32 {v(KC)}, {f32(GELU_C2)}")
    p(f"v_mov_b32 {v(KC+1)}, {f32(GELU_C1)}")
    p(f"v_mov_b32 {v(KC+2)}, 1.0")
    p(f"v_mov_b32 {v(KC+3)}, 1.0")

def softmax_pm(p,X,P,Nn,T,KL):
    E=T; F=T+8; a=T+16; b=T+17; c=T+18; d=T+19
    p(f"v_max3_f32 {v(a)}, {v(X)}, {v(X+1)}, {v(X+2)}")
    p(f"v_max3_f32 {v(b)}, -{v(X)}, -{v(X+1)}, -{v(X+2)}")
    p(f"v_max3_f32 {v(a)}, {v(a)}, {v(X+3)}, {v(X+4)}")
    p(f"v_max3_f32 {v(b)}, {v(b)}, -{v(X+3)}, -{v(X+4)}")
    p(f"v_max3_f32 {v(a)}, {v(a)}, {v(X+5)}, {v(X+6)}")
    p(f"v_max3_f32 {v(b)}, {v(b)}, -{v(X+5)}, -{v(X+6)}")
    p(f"v_max_f32 {v(a)}, {v(a)}, {v(X+7)}")
    p(f"v_max_f32 {v(b)}, {v(b)}, -{v(X+7)}")
    p(f"v_permlane32_swap_b32 {v(a)}, {v(b)}")
    p(f"v_max_f32 {v(a)}, {v(a)}, {v(b)}")
    p(f"v_mov_b32 {v(b)}, {v(a)}")
    p(f"v_permlane32_swap_b32 {v(a)}, {v(b)}")
    p(f"v_pk_mul_f32 {vr(a,2)}, {vr(a,2)}, {vr(KL,2)} op_sel:[0,1] op_sel_hi:[1,1]")
    for k in range(0,8,2):
        p(f"v_pk_fma_f32 {vr(E+k,2)}, {vr(X+k,2)}, {vr(KL,2)}, {vr(a,2)} op_sel:[0,0,0] op_sel_hi:[1,0,0]")
    for k in range(0,8,2):
        p(f"v_pk_fma_f32 {vr(F+k,2)}, {vr(X+k,2)}, {vr(KL,2)}, {vr(a,2)} op_sel:[0,1,1] op_sel_hi:[1,1,1]")
    for k in range(8): p(f"v_exp_f32 {v(E+k)}, {v(E+k)}")
    for k in range(8): p(f"v_exp_f32 {v(F+k)}, {v(F+k)}")
    assert P%2==0 and Nn%2==0
    p(f"v_pk_add_f32 {vr(P,2)}, {vr(E,2)}, {vr(E+2,2)}")
    p(f"v_pk_add_f32 {vr(P+2,2)}, {vr(E+4,2)}, {vr(E+6,2)}")
    p(f"v_pk_add_f32 {vr(Nn,2)}, {vr(F,2)}, {vr(F+2,2)}")
    p(f"v_pk_add_f32 {vr(Nn+2,2)}, {vr(F+4,2)}, {vr(F+6,2)}")
    p(f"v_pk_add_f32 {vr(P,2)}, {vr(P,2)}, {vr(P+2,2)}")
    p(f"v_pk_add_f32 {vr(Nn,2)}, {vr(Nn,2)}, {vr(Nn+2,2)}")
    p(f"v_add_f32 {v(c)}, {v(P)}, {v(P+1)}")
    p(f"v_add_f32 {v(d)}, {v(Nn)}, {v(Nn+1)}")
    p(f"v_permlane32_swap_b32 {v(c)}, {v(d)}")
    p(f"v_add_f32 {v(c)}, {v(c)}, {v(d)}")
    p(f"v_mov_b32 {v(d)}, {v(c)}")
    p(f"v_permlane32_swap_b32 {v(c)}, {v(d)}")
    p(f"v_rcp_f32 {v(c)}, {v(c)}")
    p(f"v_rcp_f32 {v(d)}, {v(d)}")
    for k in range(0,8,2):
        p(f"v_pk_mul_f32 {vr(E+k,2)}, {vr(E+k,2)}, {vr(c,2)} op_sel:[0,0] op_sel_hi:[1,0]")
    for k in range(0,8,2):
        p(f"v_pk_mul_f32 {vr(F+k,2)}, {vr(F+k,2)}, {vr(c,2)} op_sel:[0,1] op_sel_hi:[1,1]")
    for k in range(4): p(f"v_cvt_pk_bf16_f32 {v(P+k)}, {v(E+2*k)}, {v(E+2*k+1)}")
    for k in range(4): p(f"v_cvt_pk_bf16_f32 {v(Nn+k)}, {v(F+2*k)}, {v(F+2*k+1)}")
```

```python
from p1 import *

def dma_slab(p, vofs, srdreg, soff, lds_base):
    p(f"s_add_u32 m0, {s(S_KEEP)}, {lds_base}")
    for q in range(4):
        off = f" offset:{q*1024}" if q else ""
        p(f"buffer_load_dwordx4 {v(vofs+q)}, {srd(srdreg)}, {soff} offen{off} lds")

def helper_p1(p,R,stats):
    pass

def helper_p1_setup(p,R):
    H={}
    H['vA']=R.alloc(4); H['vB']=R.alloc(4)
    m=R.mark(); t0=R.alloc(); t1=R.alloc(); t2=R.alloc(); t3=R.alloc()
    vA=H['vA']; vB=H['vB']
    p(f"s_lshl_b32 {s(S_KEEP)}, {s(S_W)}, 12")
    p(f"s_cmp_ge_u32 {s(S_CT)}, 12")
    p(f"s_mov_b32 {s(SRD_A)}, {s(S_AX)}")
    p(f"s_mov_b32 {s(SRD_A+1)}, {s(S_AX+1)}")
    p(f"s_cselect_b32 {s(SRD_B)}, {s(S_W1)}, {s(S_WQKV)}")
    p(f"s_cselect_b32 {s(SRD_B+1)}, {s(S_W1+1)}, {s(S_WQKV+1)}")
    p(f"s_mov_b32 {s(S_T0)}, 0x80000")
    p(f"s_mov_b32 {s(S_T0+1)}, 0x180000")
    p(f"s_cselect_b32 {s(SRD_B+2)}, {s(S_T0)}, {s(S_T0+1)}")
    p(f"s_mov_b32 {s(S_T0)}, 1024")
    p(f"s_mov_b32 {s(S_T0+1)}, 3072")
    p(f"s_cselect_b32 {s(S_KEEP+1)}, {s(S_T0)}, {s(S_T0+1)}")
    p(f"s_mov_b32 {s(SRD_A+2)}, 0x200000")
    p(f"s_mov_b32 {s(SRD_A+3)}, 0x20000")
    p(f"s_mov_b32 {s(SRD_B+3)}, 0x20000")
    p(f"s_lshl_b32 {s(S_KEEP+2)}, {s(S_KEEP+1)}, 6")
    p(f"v_lshrrev_b32 {v(t0)}, 3, v0")
    p(f"v_and_b32 {v(t1)}, 7, v0")
    p(f"v_lshrrev_b32 {v(t2)}, 4, v0")
    p(f"s_lshl_b32 {s(S_T0)}, {s(S_RT)}, 7")
    p(f"s_lshl_b32 {s(S_T0+1)}, {s(S_W)}, 5")
    p(f"s_add_u32 {s(S_T0)}, {s(S_T0)}, {s(S_T0+1)}")
    p(f"s_lshl_b32 {s(S_T0)}, {s(S_T0)}, 10")
    p(f"v_lshlrev_b32 {v(t0)}, 10, {v(t0)}")
    p(f"v_add_u32 {v(t0)}, {s(S_T0)}, {v(t0)}")
    for q in range(4):
        if q&1: p(f"v_or_b32 {v(t3)}, 4, {v(t2)}")
        else: p(f"v_mov_b32 {v(t3)}, {v(t2)}")
        p(f"v_xor_b32 {v(t3)}, {v(t3)}, {v(t1)}")
        p(f"v_lshlrev_b32 {v(t3)}, 4, {v(t3)}")
        p(f"v_add_u32 {v(t3)}, {v(t0)}, {v(t3)}")
        p(f"v_add_u32 {v(vA+q)}, {7*q*1024}, {v(t3)}")
    p(f"v_and_b32 {v(t0)}, 15, v0")
    p(f"v_lshlrev_b32 {v(t1)}, 2, {v(t2)}")
    p(f"v_xor_b32 {v(t0)}, {v(t0)}, {v(t1)}")
    p(f"s_cmp_lt_u32 {s(S_CT)}, 4")
    p(f"s_cbranch_scc1 L_h1_plain")
    p(f"s_cmp_ge_u32 {s(S_CT)}, 12")
    p(f"s_cbranch_scc1 L_h1_plain")
    p(f"v_bfe_u32 {v(t1)}, {v(t0)}, 2, 1")
    p(f"v_lshlrev_b32 {v(t1)}, 10, {v(t1)}")
    p(f"v_lshrrev_b32 {v(t3)}, 3, {v(t0)}")
    p(f"v_lshlrev_b32 {v(t3)}, 6, {v(t3)}")
    p(f"v_add_u32 {v(t1)}, {v(t1)}, {v(t3)}")
    p(f"v_and_b32 {v(t3)}, 3, {v(t0)}")
    p(f"v_lshlrev_b32 {v(t3)}, 4, {v(t3)}")
    p(f"v_add_u32 {v(t1)}, {v(t1)}, {v(t3)}")
    p(f"s_sub_u32 {s(S_T0)}, {s(S_CT)}, 4")
    p(f"s_lshl_b32 {s(S_T0)}, {s(S_T0)}, 7")
    p(f"s_add_u32 {s(S_T0)}, {s(S_T0)}, 1024")
    p(f"v_add_u32 {v(t1)}, {s(S_T0)}, {v(t1)}")
    p(f"s_branch L_h1_coldone")
    p.label("L_h1_plain")
    p(f"s_and_b32 {s(S_T0)}, {s(S_CT)}, 3")
    p(f"s_lshl_b32 {s(S_T0)}, {s(S_T0)}, 8")
    p(f"v_lshlrev_b32 {v(t1)}, 4, {v(t0)}")
    p(f"v_add_u32 {v(t1)}, {s(S_T0)}, {v(t1)}")
    p.label("L_h1_coldone")
    p(f"s_lshl_b32 {s(S_T0)}, {s(S_W)}, 4")
    p(f"v_add_u32 {v(t2)}, {s(S_T0)}, {v(t2)}")
    p(f"v_mul_lo_u32 {v(t2)}, {v(t2)}, {s(S_KEEP+1)}")
    p(f"v_add_u32 {v(t2)}, {v(t2)}, {v(t1)}")
    p(f"s_lshl_b32 {s(S_T0)}, {s(S_KEEP+1)}, 2")
    p(f"s_sub_u32 {s(S_T0)}, {s(S_T0)}, 1024")
    p(f"v_mov_b32 {v(vB)}, {v(t2)}")
    for q in range(1,4):
        p(f"v_add_u32 {v(vB+q)}, {s(S_T0)}, {v(vB+q-1)}")
    R.release(m)
    return H

def p1_issue(p,H,i):
    p(f"s_add_u32 {s(S_T0)}, {s(S_ROT)}, {i}")
    p(f"s_and_b32 {s(S_T0)}, {s(S_T0)}, 7")
    p(f"s_mul_i32 {s(S_T0+1)}, {s(S_T0)}, {s(S_KEEP+2)}")
    p(f"s_lshl_b32 {s(S_T0)}, {s(S_T0)}, 7")
    dma_slab(p,H['vA'],SRD_A,s(S_T0),SA[i%4])
    dma_slab(p,H['vB'],SRD_B,s(S_T0+1),SB[i%4])

class Stats:
    def __init__(self,R):
        self.vaddr=R.alloc(1); self.d=R.alloc(16,4); self.sm=R.alloc(4); self.sq=R.alloc(4); self.t=R.alloc(2)
    def init(self,p):
        p(f"v_lshlrev_b32 {v(self.vaddr)}, 4, v0")
        p(f"v_add_u32 {v(self.vaddr)}, {s(S_KEEP)}, {v(self.vaddr)}")
        for q in range(4):
            p(f"v_mov_b32 {v(self.sm+q)}, 0"); p(f"v_mov_b32 {v(self.sq+q)}, 0")
    def accumulate(self,p,slot):
        for q in range(4):
            p(f"ds_read_b128 {vr(self.d+4*q,4)}, {v(self.vaddr)} offset:{slot+q*1024}")
        for q in range(4):
            p(f"s_waitcnt lgkmcnt({3-q})")
            for k in range(4):
                d=self.d+4*q+k; lo=self.t; hi=self.t+1
                p(f"v_lshlrev_b32 {v(lo)}, 16, {v(d)}")
                p(f"v_and_b32 {v(hi)}, 0xffff0000, {v(d)}")
                p(f"v_add_f32 {v(self.sm+q)}, {v(self.sm+q)}, {v(lo)}")
                p(f"v_fmac_f32 {v(self.sq+q)}, {v(lo)}, {v(lo)}")
                p(f"v_add_f32 {v(self.sm+q)}, {v(self.sm+q)}, {v(hi)}")
                p(f"v_fmac_f32 {v(self.sq+q)}, {v(hi)}, {v(hi)}")
    def finish(self,p,R):
        m=R.mark(); a=R.alloc(2,2); t=R.alloc(1)
        for q in range(4):
            for reg in (self.sm+q,self.sq+q):
                p(f"v_add_f32_dpp {v(reg)}, {v(reg)}, {v(reg)} quad_perm:[1,0,3,2] row_mask:0xf bank_mask:0xf")
            for reg in (self.sm+q,self.sq+q):
                p(f"v_add_f32_dpp {v(reg)}, {v(reg)}, {v(reg)} quad_perm:[2,3,0,1] row_mask:0xf bank_mask:0xf")
            for reg in (self.sm+q,self.sq+q):
                p(f"v_add_f32_dpp {v(reg)}, {v(reg)}, {v(reg)} row_half_mirror row_mask:0xf bank_mask:0xf")
        p(f"v_lshrrev_b32 {v(t)}, 3, v0")
        p(f"v_lshlrev_b32 {v(t)}, 3, {v(t)}")
        p(f"s_lshl_b32 {s(S_T0)}, {s(S_W)}, 8")
        p(f"s_add_u32 {s(S_T0)}, {s(S_T0)}, {L_STATS}")
        p(f"v_add_u32 {v(t)}, {s(S_T0)}, {v(t)}")
        for q in range(4):
            p(f"v_mul_f32 {v(self.sm+q)}, {f32(1/512)}, {v(self.sm+q)}")
            p(f"v_mul_f32 {v(self.sq+q)}, {f32(1/512)}, {v(self.sq+q)}")
            p(f"v_fma_f32 {v(a)}, -{v(self.sm+q)}, {v(self.sm+q)}, {v(self.sq+q)}")
            p(f"v_max_f32 {v(a)}, 0, {v(a)}")
            p(f"v_add_f32 {v(a)}, {f32(1e-5)}, {v(a)}")
            p(f"v_rsq_f32 {v(a)}, {v(a)}")
            p(f"v_mul_f32 {v(a+1)}, -{v(self.sm+q)}, {v(a)}")
            p(f"ds_write_b64 {v(t)}, {vr(a,2)} offset:{q*64}")
        p("s_waitcnt lgkmcnt(0)")
        R.release(m)

def helper_p1_loop(p,R,H,stats,prefetch=None,init_hook=None):
    st=None
    if stats:
        st=Stats(R); st.init(p)
    issued=[]
    extra_after={}
    cnt=[]
    def issue(i):
        p1_issue(p,H,i); cnt.extend([i]*8)
    stamp(p,"h_dma0")
    issue(0); issue(1)
    stamp(p,"h_dma4")
    if init_hook: init_hook(p)
    for i in range(8):
        last=max(k for k,t in enumerate(cnt) if t==i)
        p(f"s_waitcnt vmcnt({len(cnt)-1-last})")
        if i==0: stamp(p,"h_w0")
        if i==3: stamp(p,"h_w3")
        p("s_barrier")
        if i+2<8: issue(i+2)
        if prefetch:
            n=prefetch(p,i)
            cnt.extend([None]*n)
        if st: st.accumulate(p,SA[i%4])
    if st: st.finish(p,R)
```

```python
from phase1 import *

def ws_store_off(p, dst, parts):
    pass

def c_row_base(p, sdst, mbp_swap=True):
    p(f"s_lshl_b32 {s(sdst)}, {s(S_RT)}, 7")
    p(f"s_lshl_b32 {s(S_T0+7)}, {s(S_WR)}, 6")
    p(f"s_add_u32 {s(sdst)}, {s(sdst)}, {s(S_T0+7)}")

def epi_rowmajor_store(p,R,X,G,mbp,vGo,soff_reg,srdreg,pk,flags="sc1",row_pitch=1024):
    m=R.mark(); d=R.alloc(16,4)
    for t in range(4):
        p(f"ds_read_b128 {vr(d+4*t,4)}, {v(X.vRd)} offset:{t*1024}")
    for t in range(4):
        p(f"s_waitcnt lgkmcnt({3-t})")
        if t: p(f"s_add_u32 {s(soff_reg)}, {s(soff_reg)}, {8*row_pitch}")
        p(f"buffer_store_dwordx4 {vr(d+4*t,4)}, {v(vGo)}, {srd(srdreg)}, {s(soff_reg)} offen {flags}")
    R.release(m)

def ln_gelu_epilogue(p,R,G,X,vGo,row_pitch,s_rowoff,srdreg):
    m=R.mark()
    KC=R.alloc(4,2); cs1=R.alloc(16,4); st=R.alloc(4,2); T=R.alloc(16,2); pk=R.alloc(8,2); va=R.alloc(1); vb=R.alloc(1)
    gelu_consts(p,KC)
    p(f"v_lshrrev_b32 {v(va)}, 5, v0")
    p(f"v_lshlrev_b32 {v(va)}, 4, {v(va)}")
    p(f"s_lshl_b32 {s(S_T0)}, {s(S_WC)}, 8")
    p(f"s_add_u32 {s(S_T0)}, {s(S_T0)}, {L_CS}")
    p(f"s_lshl_b32 {s(S_T0+1)}, {s(S_SWN)}, 7")
    p(f"s_add_u32 {s(S_T0+2)}, {s(S_T0)}, {s(S_T0+1)}")
    p(f"s_xor_b32 {s(S_T0+1)}, {s(S_T0+1)}, 128")
    p(f"s_add_u32 {s(S_T0+3)}, {s(S_T0)}, {s(S_T0+1)}")
    p(f"v_add_u32 {v(vb)}, {s(S_T0+3)}, {v(va)}")
    p(f"v_add_u32 {v(va)}, {s(S_T0+2)}, {v(va)}")
    p(f"s_mov_b32 exec_lo, 1")
    p(f"s_mov_b32 exec_hi, 1")
    for j in range(4):
        p(f"ds_write_b128 {v(va)}, {vr(G.xacc+4*j,4)} offset:{j*32}")
    p(f"s_mov_b64 exec, -1")
    p("s_waitcnt lgkmcnt(0)")
    p("s_barrier")
    for j in range(4):
        p(f"ds_read_b128 {vr(cs1+4*j,4)}, {v(vb)} offset:{j*32}")
    p(f"v_and_b32 {v(va)}, 31, v0")
    p(f"v_lshlrev_b32 {v(va)}, 3, {v(va)}")
    p(f"s_lshl_b32 {s(S_T0)}, {s(S_WR)}, 9")
    p(f"s_add_u32 {s(S_T0)}, {s(S_T0)}, {L_STATS}")
    p(f"v_add_u32 {v(va)}, {s(S_T0)}, {v(va)}")
    p(f"ds_read_b64 {vr(st,2)}, {v(va)}")
    p(f"ds_read_b64 {vr(st+2,2)}, {v(va)} offset:256")
    p("s_waitcnt lgkmcnt(0)")
    for mb in range(2):
        S=st+2*mb
        for nb in range(2):
            A=G.A(mb,nb); cs = G.xacc if nb==0 else cs1
            for k in range(0,16,2):
                p(f"v_pk_mul_f32 {vr(T+k,2)}, {vr(cs+k,2)}, {vr(S,2)} op_sel:[0,1] op_sel_hi:[1,1]")
            for k in range(0,16,2):
                p(f"v_pk_fma_f32 {vr(A+k,2)}, {vr(A+k,2)}, {vr(S,2)}, {vr(T+k,2)} op_sel:[0,0,0] op_sel_hi:[1,0,1]")
            gelu_pairs(p,A,16,T,KC)
            pack16(p,pk if False else T, A) if False else None
            for k in range(8): p(f"v_cvt_pk_bf16_f32 {v(pk+k)}, {v(A+2*k)}, {v(A+2*k+1)}")
            X.write(p,nb,pk)
        p(f"s_add_u32 {s(S_T0+4)}, {s(s_rowoff)}, {mb*32*row_pitch}")
        epi_rowmajor_store(p,R,X,G,mb,vGo,S_T0+4,srdreg,pk,row_pitch=row_pitch)
    R.release(m)

def plain_epilogue(p,R,G,X,vGo,row_pitch,s_rowoff,srdreg):
    m=R.mark(); pk=R.alloc(8,2)
    p("s_barrier")
    for mb in range(2):
        for nb in range(2):
            A=G.A(mb,nb)
            for k in range(8): p(f"v_cvt_pk_bf16_f32 {v(pk+k)}, {v(A+2*k)}, {v(A+2*k+1)}")
            X.write(p,nb,pk)
        p(f"s_add_u32 {s(S_T0+4)}, {s(s_rowoff)}, {mb*32*row_pitch}")
        epi_rowmajor_store(p,R,X,G,mb,vGo,S_T0+4,srdreg,pk,row_pitch=row_pitch)
    R.release(m)

def rowmajor_voff(p,R,dst,row_pitch):
    m=R.mark(); t=R.alloc()
    p(f"v_lshrrev_b32 {v(t)}, 3, v0")
    p(f"v_mul_u32_u24 {v(t)}, {row_pitch}, {v(t)}")
    p(f"v_and_b32 {v(dst)}, 7, v0")
    p(f"v_lshlrev_b32 {v(dst)}, 4, {v(dst)}")
    p(f"v_add_u32 {v(dst)}, {v(dst)}, {v(t)}")
    R.release(m)

def compute_p1_Q(p,R,G,X):
    p.comment("==== P1 compute: Q tile")
    m0=R.mark()
    p(f"s_mov_b32 {s(S_SWM)}, {s(S_WC)}")
    p(f"s_mov_b32 {s(S_SWN)}, 0")
    G.setup(p,R); X.setup(p,R)
    vEb=R.alloc(1)
    p(f"v_lshrrev_b32 {v(vEb)}, 5, v0")
    p(f"v_lshlrev_b32 {v(vEb)}, 4, {v(vEb)}")
    p(f"v_add_u32 {v(vEb)}, {L_GATE}, {v(vEb)}")
    def hook(i):
        p(f"s_add_u32 {s(S_T0)}, {s(S_ROT)}, {i}")
        p(f"s_and_b32 {s(S_T0)}, {s(S_T0)}, 7")
        p(f"s_lshl_b32 {s(S_T0)}, {s(S_T0)}, 7")
        p(f"v_add_u32 {v(G.vE)}, {s(S_T0)}, {v(vEb)}")
    G.main(p,[SA[i%4] for i in range(8)],[SB[i%4] for i in range(8)],"TT",extra='gate',stage_hook=hook)
    p("s_barrier")
    pk=R.alloc(8,2); d=R.alloc(16,4); vq=R.alloc(4); vGo=R.alloc(1); t=R.alloc(2)
    p(f"v_lshrrev_b32 {v(t)}, 1, v0")
    p(f"v_and_b32 {v(t+1)}, 7, {v(t)}")
    p(f"v_and_b32 {v(vGo)}, 1, v0")
    p(f"v_xor_b32 {v(t+1)}, {v(t+1)}, {v(vGo)}")
    p(f"v_lshlrev_b32 {v(t+1)}, 4, {v(t+1)}")
    p(f"v_lshlrev_b32 {v(vq)}, 7, {v(t)}")
    p(f"v_add_u32 {v(vq)}, {v(vq)}, {v(t+1)}")
    p(f"s_lshl_b32 {s(S_T0)}, {s(S_WAVE)}, 12")
    p(f"s_add_u32 {s(S_T0)}, {s(S_T0)}, {M_SCR}")
    p(f"v_add_u32 {v(vq)}, {s(S_T0)}, {v(vq)}")
    for hd in range(1,4): p(f"v_xor_b32 {v(vq+hd)}, {hd<<5}, {v(vq)}")
    p(f"v_lshlrev_b32 {v(vGo)}, 4, v0")
    c_row_base(p,S_T0+5)
    p(f"s_lshl_b32 {s(S_T0+5)}, {s(S_T0+5)}, 5")
    p(f"s_lshl_b32 {s(S_T0+6)}, {s(S_CT)}, 3")
    p(f"s_lshl_b32 {s(S_T0+7)}, {s(S_WC)}, 2")
    p(f"s_add_u32 {s(S_T0+6)}, {s(S_T0+6)}, {s(S_T0+7)}")
    p(f"s_lshl_b32 {s(S_T0+6)}, {s(S_T0+6)}, 16")
    p(f"s_add_u32 {s(S_T0+5)}, {s(S_T0+5)}, {s(S_T0+6)}")
    p(f"s_add_u32 {s(S_T0+5)}, {s(S_T0+5)}, {Q_OFF}")
    for mbp in range(2):
        for nb in range(2):
            A=G.A(mbp,nb)
            for k in range(8): p(f"v_cvt_pk_bf16_f32 {v(pk+k)}, {v(A+2*k)}, {v(A+2*k+1)}")
            X.write(p,nb,pk)
        for hd in range(4): p(f"ds_read_b128 {vr(d+4*hd,4)}, {v(vq+hd)}")
        p(f"s_xor_b32 {s(S_T0)}, {s(S_SWM)}, {mbp}")
        p(f"s_lshl_b32 {s(S_T0)}, {s(S_T0)}, 10")
        p(f"s_add_u32 {s(S_T0)}, {s(S_T0)}, {s(S_T0+5)}")
        for hd in range(4):
            p(f"s_waitcnt lgkmcnt({3-hd})")
            if hd: p(f"s_add_u32 {s(S_T0)}, {s(S_T0)}, 0x10000")
            p(f"buffer_store_dwordx4 {vr(d+4*hd,4)}, {v(vGo)}, {srd(SRD_WS)}, {s(S_T0)} offen sc1")
    p(f"s_cmp_lg_u32 {s(S_CT)}, 0")
    p(f"s_cbranch_scc1 L_c1q_nogate")
    p(f"v_mul_f32 {v(t)}, {f32(-LOG2E)}, {v(G.xacc)}")
    p(f"v_exp_f32 {v(t)}, {v(t)}")
    p(f"v_add_f32 {v(t)}, 1.0, {v(t)}")
    p(f"v_rcp_f32 {v(t)}, {v(t)}")
    c_row_base(p,S_T0+5)
    p(f"s_lshl_b32 {s(S_T0)}, {s(S_SWM)}, 5")
    p(f"s_add_u32 {s(S_T0+5)}, {s(S_T0+5)}, {s(S_T0)}")
    p(f"s_lshl_b32 {s(S_T0+5)}, {s(S_T0+5)}, 2")
    p(f"s_add_u32 {s(S_T0+5)}, {s(S_T0+5)}, {G_OFF}")
    p(f"v_lshlrev_b32 {v(t+1)}, 2, v0")
    p(f"s_mov_b32 exec_hi, 0")
    p(f"buffer_store_dword {v(t)}, {v(t+1)}, {srd(SRD_WS)}, {s(S_T0+5)} offen sc1")
    p(f"s_mov_b64 exec, -1")
    p.label("L_c1q_nogate")
    p("s_barrier")
    R.release(m0)

def compute_p1_W1(p,R,G,X):
    p.comment("==== P1 compute: W1 tile")
    m0=R.mark()
    p(f"s_mov_b32 {s(S_SWM)}, 0")
    p(f"s_mov_b32 {s(S_SWN)}, {s(S_WR)}")
    G.setup(p,R); X.setup(p,R)
    for k in range(4): p(f"v_mov_b32 {v(G.fe[0]+k)}, 0x3f803f80")
    G.main(p,[SA[i%4] for i in range(8)],[SB[i%4] for i in range(8)],"TT",extra='colsum')
    vGo=R.alloc(1); rowmajor_voff(p,R,vGo,1024)
    c_row_base(p,S_KEEP)
    p(f"s_lshl_b32 {s(S_KEEP)}, {s(S_KEEP)}, 10")
    p(f"s_and_b32 {s(S_T0)}, {s(S_CT)}, 3")
    p(f"s_lshl_b32 {s(S_T0)}, {s(S_T0)}, 8")
    p(f"s_add_u32 {s(S_KEEP)}, {s(S_KEEP)}, {s(S_T0)}")
    p(f"s_lshl_b32 {s(S_T0)}, {s(S_WC)}, 7")
    p(f"s_add_u32 {s(S_KEEP)}, {s(S_KEEP)}, {s(S_T0)}")
    if H_OFF: p(f"s_add_u32 {s(S_KEEP)}, {s(S_KEEP)}, {H_OFF}")
    ln_gelu_epilogue(p,R,G,X,vGo,1024,S_KEEP,SRD_WS)
    p("s_barrier")
    R.release(m0)

def compute_p1_KV(p,R,G,X):
    p.comment("==== P1 compute: KV tile")
    m0=R.mark()
    p(f"s_mov_b32 {s(S_SWM)}, 0")
    p(f"s_mov_b32 {s(S_SWN)}, 0")
    G.setup(p,R)
    G.main(p,[SA[i%4] for i in range(8)],[SB[i%4] for i in range(8)],"TN",extra=None)
    p("s_barrier")
    fb=G.fx[0][0]
    assert G.fw[1][1]==fb+28
    kb=fb; vb=fb+8; vb2=fb+16; Pp=fb+24; Nn=fb+28; PK=G.xacc; ph=G.fe[0]
    KL=R.alloc(2,2); wA=R.alloc(4,4); wB=R.alloc(4,4)
    T=R.alloc(20,2)
    vPW=R.alloc(4); vPR=R.alloc(2)
    KVa=R.alloc(16,4); KVb=R.alloc(16,4); t=R.alloc(4)
    p(f"v_mov_b32 {v(KL)}, {f32(LOG2E)}")
    p(f"v_mov_b32 {v(KL+1)}, {f32(-LOG2E)}")
    p(f"v_bfe_u32 {v(t)}, v0, 2, 2")
    p(f"v_lshrrev_b32 {v(t+1)}, 5, v0")
    p(f"v_lshlrev_b32 {v(t+1)}, 2, {v(t+1)}")
    p(f"v_add_u32 {v(t)}, {v(t)}, {v(t+1)}")
    p(f"v_lshlrev_b32 {v(t)}, 5, {v(t)}")
    p(f"v_and_b32 {v(t+1)}, 3, v0")
    p(f"v_lshlrev_b32 {v(t+1)}, 3, {v(t+1)}")
    p(f"v_add_u32 {v(t)}, {v(t)}, {v(t+1)}")
    p(f"s_lshl_b32 {s(S_T0)}, {s(S_WC)}, 10")
    p(f"s_add_u32 {s(S_T0)}, {s(S_T0)}, {L_WPHI}")
    p(f"v_add_u32 {v(t)}, {s(S_T0)}, {v(t)}")
    p(f"ds_read_b64_tr_b16 {vr(wA,2)}, {v(t)}")
    p(f"ds_read_b64_tr_b16 {vr(wA+2,2)}, {v(t)} offset:256")
    p(f"ds_read_b64_tr_b16 {vr(wB,2)}, {v(t)} offset:512")
    p(f"ds_read_b64_tr_b16 {vr(wB+2,2)}, {v(t)} offset:768")
    p(f"s_lshl_b32 {s(S_T0)}, {s(S_WAVE)}, 12")
    p(f"s_add_u32 {s(S_T0)}, {s(S_T0)}, {M_SCR}")
    p(f"v_lshrrev_b32 {v(t+1)}, 5, v0")
    p(f"v_bfe_u32 {v(t+2)}, v0, 1, 3")
    p(f"v_xor_b32 {v(t+1)}, {v(t+1)}, {v(t+2)}")
    p(f"v_lshlrev_b32 {v(t+1)}, 3, {v(t+1)}")
    p(f"v_and_b32 {v(t+2)}, 31, v0")
    p(f"v_lshlrev_b32 {v(t+2)}, 6, {v(t+2)}")
    p(f"v_add_u32 {v(t+2)}, {s(S_T0)}, {v(t+2)}")
    for jj in range(4):
        p(f"v_xor_b32 {v(t+3)}, {jj<<4}, {v(t+1)}")
        p(f"v_add_u32 {v(vPW+jj)}, {v(t+2)}, {v(t+3)}")
    p(f"v_lshrrev_b32 {v(t+1)}, 5, v0")
    p(f"v_bfe_u32 {v(t+2)}, v0, 2, 2")
    p(f"v_lshlrev_b32 {v(t+3)}, 2, {v(t+1)}")
    p(f"v_add_u32 {v(t+3)}, {v(t+3)}, {v(t+2)}")
    p(f"v_lshlrev_b32 {v(t+3)}, 6, {v(t+3)}")
    p(f"v_add_u32 {v(t+3)}, {s(S_T0)}, {v(t+3)}")
    p(f"v_lshlrev_b32 {v(t+1)}, 1, {v(t+1)}")
    p(f"v_bfe_u32 {v(t+2)}, v0, 3, 1")
    p(f"v_add_u32 {v(t+1)}, {v(t+1)}, {v(t+2)}")
    p(f"v_bfe_u32 {v(t+2)}, v0, 4, 1")
    p(f"v_lshlrev_b32 {v(t+2)}, 2, {v(t+2)}")
    p(f"v_and_b32 {v(vPR)}, 3, v0")
    p(f"v_add_u32 {v(t+2)}, {v(t+2)}, {v(vPR)}")
    p(f"v_xor_b32 {v(t+1)}, {v(t+1)}, {v(t+2)}")
    p(f"v_lshlrev_b32 {v(t+1)}, 3, {v(t+1)}")
    p(f"v_add_u32 {v(vPR)}, {v(t+3)}, {v(t+1)}")
    p(f"v_xor_b32 {v(t+1)}, 32, {v(t+1)}")
    p(f"v_add_u32 {v(vPR+1)}, {v(t+3)}, {v(t+1)}")
    p("s_waitcnt lgkmcnt(0)")
    p(f"s_mov_b32 exec_lo, 0xffff0000")
    p(f"s_mov_b32 exec_hi, 0xffff0000")
    for k in range(4): p(f"v_mov_b32 {v(wA+k)}, 0")
    p(f"s_mov_b32 exec_lo, 0x0000ffff")
    p(f"s_mov_b32 exec_hi, 0x0000ffff")
    for k in range(4): p(f"v_mov_b32 {v(wB+k)}, 0")
    p(f"s_mov_b64 exec, -1")
    for mb in range(2):
        K=G.A(mb,0); V=G.A(mb,1)
        for k in range(8): p(f"v_cvt_pk_bf16_f32 {v(kb+k)}, {v(K+2*k)}, {v(K+2*k+1)}")
        p(f"v_mfma_f32_32x32x16_bf16 {vr(PK,16)}, {vr(wA,4)}, {vr(kb,4)}, 0")
        p(f"v_mfma_f32_32x32x16_bf16 {vr(PK,16)}, {vr(wB,4)}, {vr(kb+4,4)}, {vr(PK,16)}")
        for k in range(8): p(f"v_cvt_pk_bf16_f32 {v(vb+k)}, {v(V+2*k)}, {v(V+2*k+1)}")
        for k in range(8): p(f"v_mov_b32 {v(vb2+k)}, 0x3f803f80")
        for k in range(8): p(f"v_permlane16_swap_b32 {v(vb+k)}, {v(vb2+k)}")
        for hd in range(2):
            softmax_pm(p,PK+8*hd,Pp,Nn,T,KL)
            o=hd*2048
            p(f"ds_write_b64 {v(vPW+0)}, {vr(Pp,2)} offset:{o}")
            p(f"ds_write_b64 {v(vPW+1)}, {vr(Pp+2,2)} offset:{o}")
            p(f"ds_write_b64 {v(vPW+2)}, {vr(Nn,2)} offset:{o}")
            p(f"ds_write_b64 {v(vPW+3)}, {vr(Nn+2,2)} offset:{o}")
        for hd in range(2):
            KV = KVa if hd==0 else KVb
            VB = vb if hd==0 else vb2
            for tt in range(2):
                o=hd*2048+tt*1024
                p(f"ds_read_b64_tr_b16 {vr(ph,2)}, {v(vPR)} offset:{o}")
                p(f"ds_read_b64_tr_b16 {vr(ph+2,2)}, {v(vPR+1)} offset:{o+512}")
                p("s_waitcnt lgkmcnt(0)")
                c = "0" if (mb==0 and tt==0) else vr(KV,16)
                p(f"v_mfma_f32_32x32x16_bf16 {vr(KV,16)}, {vr(ph,4)}, {vr(VB+4*tt,4)}, {c}")
    p(f"v_lshlrev_b32 {v(t)}, 4, v0")
    p(f"s_lshl_b32 {s(S_T0)}, {s(S_WAVE)}, 12")
    p(f"s_add_u32 {s(S_T0+1)}, {s(S_T0)}, {M_SCR}")
    p(f"s_xor_b32 {s(S_T0)}, {s(S_T0)}, {2<<12}")
    p(f"s_add_u32 {s(S_T0)}, {s(S_T0)}, {M_SCR}")
    p(f"v_add_u32 {v(t+1)}, {s(S_T0)}, {v(t)}")
    p(f"v_add_u32 {v(t)}, {s(S_T0+1)}, {v(t)}")
    p(f"s_cmp_eq_u32 {s(S_WR)}, 0")
    p(f"s_cbranch_scc1 L_kv_x0")
    for k in range(16): p(f"v_mov_b32 {v(PK+k)}, {v(KVa+k)}")
    for k in range(16): p(f"v_mov_b32 {v(KVa+k)}, {v(KVb+k)}")
    for k in range(16): p(f"v_mov_b32 {v(KVb+k)}, {v(PK+k)}")
    p.label("L_kv_x0")
    for q in range(4): p(f"ds_write_b128 {v(t)}, {vr(KVb+4*q,4)} offset:{q*1024}")
    p("s_waitcnt lgkmcnt(0)")
    p("s_barrier")
    for q in range(4): p(f"ds_read_b128 {vr(PK+4*q,4)}, {v(t+1)} offset:{q*1024}")
    p("s_waitcnt lgkmcnt(0)")
    for k in range(0,16,2): p(f"v_pk_add_f32 {vr(KVa+k,2)}, {vr(KVa+k,2)}, {vr(PK+k,2)}")
    for k in range(8): p(f"v_cvt_pk_bf16_f32 {v(vb+k)}, {v(KVa+2*k)}, {v(KVa+2*k+1)}")
    p(f"s_sub_u32 {s(S_T0)}, {s(S_CT)}, 4")
    p(f"s_lshl_b32 {s(S_T0)}, {s(S_T0)}, 2")
    p(f"s_lshl_b32 {s(S_T0+1)}, {s(S_WC)}, 1")
    p(f"s_add_u32 {s(S_T0)}, {s(S_T0)}, {s(S_T0+1)}")
    p(f"s_add_u32 {s(S_T0)}, {s(S_T0)}, {s(S_WR)}")
    p(f"s_lshl_b32 {s(S_T0)}, {s(S_T0)}, 4")
    p(f"s_add_u32 {s(S_T0)}, {s(S_T0)}, {s(S_RT)}")
    p(f"s_lshl_b32 {s(S_T0)}, {s(S_T0)}, 11")
    p(f"s_add_u32 {s(S_T0)}, {s(S_T0)}, {KVP_OFF}")
    p(f"v_lshlrev_b32 {v(t)}, 4, v0")
    p(f"buffer_store_dwordx4 {vr(vb,4)}, {v(t)}, {srd(SRD_WS)}, {s(S_T0)} offen sc1")
    p(f"buffer_store_dwordx4 {vr(vb+4,4)}, {v(t)}, {srd(SRD_WS)}, {s(S_T0)} offen offset:1024 sc1")
    R.release(m0)
```

```python
from g64 import *

def p24_ids(p):
    p(f"s_lshl_b32 {s(S_R64)}, {s(S_X)}, 2")
    p(f"s_and_b32 {s(S_T0)}, {s(S_J)}, 3")
    p(f"s_add_u32 {s(S_R64)}, {s(S_R64)}, {s(S_T0)}")
    p(f"s_lshr_b32 {s(S_C8)}, {s(S_J)}, 2")

def b64_voffs(p,R,dst):
    m=R.mark(); t0=R.alloc(); t1=R.alloc()
    p(f"v_lshrrev_b32 {v(t0)}, 3, v0")
    p(f"s_lshl_b32 {s(S_T0)}, {s(S_W)}, 5")
    p(f"v_add_u32 {v(t0)}, {s(S_T0)}, {v(t0)}")
    p(f"v_lshlrev_b32 {v(t0)}, 10, {v(t0)}")
    p(f"v_bfe_u32 {v(t1)}, v0, 4, 1")
    p(f"v_lshlrev_b32 {v(t1)}, 2, {v(t1)}")
    p(f"v_and_b32 {v(dst)}, 7, v0")
    p(f"v_xor_b32 {v(t1)}, {v(t1)}, {v(dst)}")
    p(f"v_lshlrev_b32 {v(t1)}, 4, {v(t1)}")
    p(f"v_add_u32 {v(t0)}, {v(t0)}, {v(t1)}")
    p(f"s_lshl_b32 {s(S_T0)}, {s(S_C8)}, 7")
    p(f"v_add_u32 {v(dst)}, {s(S_T0)}, {v(t0)}")
    for q in range(1,4): p(f"v_add_u32 {v(dst+q)}, {7*1024}, {v(dst+q-1)}")
    R.release(m)

def a64_voffs(p,R,dst,pitch,row_shift=0,check=False):
    m=R.mark(); t0=R.alloc(); t1=R.alloc(); t2=R.alloc(); t3=R.alloc()
    p(f"v_lshrrev_b32 {v(t0)}, 4, v0")
    p(f"s_lshl_b32 {s(S_T0)}, {s(S_R64)}, 6")
    p(f"s_lshl_b32 {s(S_T0+1)}, {s(S_W)}, 4")
    p(f"s_add_u32 {s(S_T0)}, {s(S_T0)}, {s(S_T0+1)}")
    p(f"v_and_b32 {v(t1)}, 15, v0")
    p(f"s_mov_b32 {s(S_T0+2)}, {pitch}")
    for q in range(4):
        p(f"v_add_u32 {v(t2)}, {4*q}, {v(t0)}")
        p(f"v_xor_b32 {v(t3)}, {v(t2)}, {v(t1)}")
        p(f"v_lshlrev_b32 {v(t3)}, 4, {v(t3)}")
        p(f"v_add_u32 {v(t2)}, {s(S_T0)}, {v(t2)}")
        if row_shift: p(f"v_add_u32 {v(t2)}, {(-row_shift)&0xffffffff}, {v(t2)}")
        p(f"v_mul_lo_u32 {v(dst+q)}, {v(t2)}, {s(S_T0+2)}")
        p(f"v_add_u32 {v(dst+q)}, {v(dst+q)}, {v(t3)}")
        if q: p(f"v_add_u32 {v(dst+q)}, {(-q*1024)&0xffffffff}, {v(dst+q)}")
        if check:
            p(f"v_cmp_gt_u32 vcc, 2048, {v(t2)}")
            p(f"v_mov_b32 {v(t3)}, 0x80000000")
            p(f"v_cndmask_b32 {v(dst+q)}, {v(t3)}, {v(dst+q)}, vcc")
    R.release(m)

SHIFTS=[1,-1,2,-2]

def p2_flagidx(p,a,R):
    m=R.mark(); t=R.alloc(); u=R.alloc()
    p(f"v_and_b32 {v(a)}, 15, v0")
    p(f"v_lshlrev_b32 {v(a)}, 4, {v(a)}")
    p(f"s_lshr_b32 {s(S_T0+2)}, {s(S_R64)}, 2")
    p(f"s_add_u32 {s(S_T0+2)}, {s(S_T0+2)}, 4")
    p(f"v_add_u32 {v(a)}, {s(S_T0+2)}, {v(a)}")
    p(f"s_lshl_b32 {s(S_T0+2)}, {s(S_C8)}, 1")
    p(f"v_subrev_u32 {v(t)}, 16, v0")
    p(f"v_add_u32 {v(u)}, {s(S_T0+2)}, {v(t)}")
    p(f"v_lshlrev_b32 {v(u)}, 4, {v(u)}")
    p(f"s_lshr_b32 {s(S_T0+2)}, {s(S_R64)}, 3")
    p(f"v_add_u32 {v(u)}, {s(S_T0+2)}, {v(u)}")
    p(f"v_cmp_gt_u32 vcc, 2, {v(t)}")
    p(f"v_cndmask_b32 {v(a)}, {v(a)}, {v(u)}, vcc")
    p(f"s_lshl_b32 {s(S_T0+2)}, {s(S_R64)}, 6")
    p(f"s_sub_i32 {s(S_T0+3)}, {s(S_T0+2)}, 2")
    p(f"s_max_i32 {s(S_T0+3)}, {s(S_T0+3)}, 0")
    p(f"s_lshr_b32 {s(S_T0+3)}, {s(S_T0+3)}, 7")
    p(f"s_add_u32 {s(S_T0+4)}, {s(S_T0+2)}, 65")
    p(f"s_min_u32 {s(S_T0+4)}, {s(S_T0+4)}, 2047")
    p(f"s_lshr_b32 {s(S_T0+4)}, {s(S_T0+4)}, 7")
    for base,reg in ((18,S_T0+3),(22,S_T0+4)):
        p(f"s_lshl_b32 {s(reg)}, {s(reg)}, 4")
        p(f"s_add_u32 {s(reg)}, {s(reg)}, 12")
        p(f"v_subrev_u32 {v(t)}, {base}, v0")
        p(f"v_add_u32 {v(u)}, {s(reg)}, {v(t)}")
        p(f"v_cmp_gt_u32 vcc, 4, {v(t)}")
        p(f"v_cndmask_b32 {v(a)}, {v(a)}, {v(u)}, vcc")
    R.release(m)

def compute_p2(p,R,G,X,x1keep,PA):
    p.comment("==== P2 compute: W2 GEMM tile")
    m0=R.mark()
    p24_ids(p)
    G.setup(p,R); X.setup(p,R)
    vo=R.alloc(1); xr=R.alloc(8,4); hs=R.alloc(8,4); pk=R.alloc(8,2); fa=R.alloc(8,2); fb=R.alloc(8,2)
    tile64_voff(p,R,vo)
    tile64_soff(p,S_KEEP+5)
    set_srd(p,SRD_T,S_AX,0x200000)
    p(f"buffer_load_dwordx4 {vr(xr,4)}, {v(vo)}, {srd(SRD_T)}, {s(S_KEEP+5)} offen")
    p(f"s_add_u32 {s(S_T0)}, {s(S_KEEP+5)}, {16*1024}")
    p(f"buffer_load_dwordx4 {vr(xr+4,4)}, {v(vo)}, {srd(SRD_T)}, {s(S_T0)} offen")
    from flags import poll_own, push2_prepare
    push2_prepare(p,R,PA,S_R64,S_C8)
    p(f"s_mov_b32 {s(S_KEEP+7)}, 0x3ffffff")
    p(f"s_cmp_eq_u32 {s(S_R64)}, 0"); p(f"s_cselect_b32 {s(S_KEEP+7)}, 0x3fffff, {s(S_KEEP+7)}")
    p(f"s_cmp_eq_u32 {s(S_R64)}, 31"); p(f"s_cselect_b32 {s(S_KEEP+7)}, 0x3fffff, {s(S_KEEP+7)}")
    poll_own(p,R,"p2",0,S_KEEP+7)
    stamp(p,"p2_flags")
    p("s_barrier")
    p("s_barrier")
    stamp(p,"p2_R")
    G.main(p,[8,8,8,8],SA,SB)
    stamp(p,"p2_mend")
    p("s_barrier")
    X.roundtrip(p,G.acc,pk,hs)
    p("s_waitcnt vmcnt(0) lgkmcnt(0)")
    for t in range(2):
        unpack8(p,fa,xr+4*t); unpack8(p,fb,hs+4*t)
        for k in range(0,8,2): p(f"v_pk_add_f32 {vr(fa+k,2)}, {vr(fa+k,2)}, {vr(fb+k,2)}")
        for k in range(4): p(f"v_cvt_pk_bf16_f32 {v(x1keep+4*t+k)}, {v(fa+2*k)}, {v(fa+2*k+1)}")
        p(f"s_add_u32 {s(S_T0)}, {s(S_KEEP+5)}, {X1_OFF+t*16*1024}")
        p(f"buffer_store_dwordx4 {vr(x1keep+4*t,4)}, {v(vo)}, {srd(SRD_WS)}, {s(S_T0)} offen sc1")
    R.release(m0)

def helper_p2_pre(p,R,HP):
    p24_ids(p)
    HP['vW']=R.alloc(4)
    b64_voffs(p,R,HP['vW'])

def w2_prefetch(p,HP,g):
    if g==0: set_srd(p,SRD_B,S_W2,0x80000)
    p(f"s_mov_b32 {s(S_T0)}, {g<<17:#x}")
    dma_slab(p,HP['vW'],SRD_B,s(S_T0),SB[g])
    return 4

def helper_p2(p,R,HP,next_prefetch=None):
    p.comment("==== P2 helper: loads + attention apply")
    m0=R.mark()
    vAh=R.alloc(16); part=R.alloc(32,4); qf=R.alloc(8,4); acc=R.alloc(16,4); kz=R.alloc(8,4); wf=R.alloc(4,4)
    PQ=R.alloc(16,4); T=R.alloc(20,2); Pp=R.alloc(4,4); Nn=R.alloc(4,4); KL=R.alloc(2,2); c10=R.alloc(1); c01=R.alloc(1)
    vl=R.alloc(1); t=R.alloc(4,4); O=R.alloc(16,4); O2=R.alloc(4,4); vqo=R.alloc(1)
    for g in range(4): a64_voffs(p,R,vAh+4*g,1024,SHIFTS[g],check=True)
    p(f"v_lshlrev_b32 {v(vl)}, 4, v0")
    p(f"s_cmp_lg_u32 {s(S_W)}, 0"); p("s_cbranch_scc1 L_h2_nowphi")
    set_srd(p,SRD_T,S_WPHI,16384)
    p(f"s_lshr_b32 {s(S_T0)}, {s(S_R64)}, 1"); p(f"s_lshl_b32 {s(S_T0)}, {s(S_T0)}, 10")
    p(f"s_mov_b32 m0, {L_WPHI}")
    p(f"buffer_load_dwordx4 {v(vl)}, {srd(SRD_T)}, {s(S_T0)} offen lds")
    p.label("L_h2_nowphi")
    p(f"v_and_b32 {v(vqo)}, 31, v0"); p(f"v_lshlrev_b32 {v(vqo)}, 5, {v(vqo)}")
    p(f"v_lshrrev_b32 {v(O)}, 5, v0"); p(f"v_lshlrev_b32 {v(O)}, 4, {v(O)}")
    p(f"v_add_u32 {v(vqo)}, {v(vqo)}, {v(O)}")
    p(f"v_mov_b32 {v(KL)}, {f32(LOG2E)}"); p(f"v_mov_b32 {v(KL+1)}, {f32(-LOG2E)}")
    p(f"v_mov_b32 {v(c10)}, 0x00003f80"); p(f"v_mov_b32 {v(c01)}, 0x3f800000")
    set_srd(p,SRD_A,S_WS,0x200000,H_OFF)
    p("s_waitcnt vmcnt(0) lgkmcnt(0)")
    p("s_barrier")
    p(f"s_lshl_b32 {s(S_T0)}, {s(S_R64)}, 4"); p(f"s_lshl_b32 {s(S_T0+1)}, {s(S_W)}, 2")
    p(f"s_add_u32 {s(S_T0)}, {s(S_T0)}, {s(S_T0+1)}"); p(f"s_lshl_b32 {s(S_T0)}, {s(S_T0)}, 11")
    p(f"s_add_u32 {s(S_T0)}, {s(S_T0)}, {KVP_OFF}")
    for i in range(4):
        for tt in range(2):
            off=i*2048+tt*1024
            p(f"buffer_load_dwordx4 {vr(part+8*i+4*tt,4)}, {v(vl)}, {srd(SRD_WS)}, {s(S_T0)} offen offset:{off%4096} sc1" if off<4096 else
              f"buffer_load_dwordx4 {vr(part+8*i+4*tt,4)}, {v(vl)}, {srd(SRD_WS)}, {s(S_T0+1)} offen offset:{off-4096} sc1")
        if i==1: p(f"s_add_u32 {s(S_T0+1)}, {s(S_T0)}, 4096")
    p(f"s_lshl_b32 {s(S_T0+2)}, {s(S_R64)}, 16"); p(f"s_lshl_b32 {s(S_T0+3)}, {s(S_C8)}, 13")
    p(f"s_add_u32 {s(S_T0+2)}, {s(S_T0+2)}, {s(S_T0+3)}"); p(f"s_lshl_b32 {s(S_T0+3)}, {s(S_W)}, 11")
    p(f"s_add_u32 {s(S_T0+2)}, {s(S_T0+2)}, {s(S_T0+3)}")
    p(f"s_add_u32 {s(S_KEEP+6)}, {s(S_T0+2)}, {O_OFF}")
    p(f"s_add_u32 {s(S_T0+2)}, {s(S_T0+2)}, {Q_OFF}")
    p(f"buffer_load_dwordx4 {vr(qf,4)}, {v(vqo)}, {srd(SRD_WS)}, {s(S_T0+2)} offen sc1")
    p(f"buffer_load_dwordx4 {vr(qf+4,4)}, {v(vqo)}, {srd(SRD_WS)}, {s(S_T0+2)} offen offset:1024 sc1")
    for g in range(4):
        p(f"s_mov_b32 {s(S_T0)}, {g*256}")
        p(f"s_add_u32 m0, {s(S_KEEP)}, {SA[g]}")
        for q in range(4):
            off=f" offset:{q*1024}" if q else ""
            p(f"buffer_load_dwordx4 {v(vAh+4*g+q)}, {srd(SRD_A)}, {s(S_T0)} offen{off} sc1 lds")
    stamp(p,"p2_flags")
    p("s_waitcnt vmcnt(18)")
    stamp(p,"p2_part")
    for r in range(8):
        for i in range(4):
            d=part+8*i+r
            if i==0:
                p(f"v_lshlrev_b32 {v(acc+2*r)}, 16, {v(d)}"); p(f"v_and_b32 {v(acc+2*r+1)}, 0xffff0000, {v(d)}")
            else:
                p(f"v_dot2_f32_bf16 {v(acc+2*r)}, {v(d)}, {v(c10)}, {v(acc+2*r)}")
                p(f"v_dot2_f32_bf16 {v(acc+2*r+1)}, {v(d)}, {v(c01)}, {v(acc+2*r+1)}")
    p(f"s_lshl_b32 {s(S_T0)}, {s(S_W)}, 12"); p(f"s_add_u32 {s(S_T0)}, {s(S_T0)}, {M_SCR}")
    p(f"v_add_u32 {v(t)}, {s(S_T0)}, {v(vl)}")
    for q in range(4): p(f"ds_write_b128 {v(t)}, {vr(acc+4*q,4)} offset:{q*1024}")
    p(f"v_add_u32 {v(t)}, {M_SCR}, {v(vl)}")
    p("s_waitcnt lgkmcnt(0)")
    stamp(p,"p2_add")
    p("s_barrier")
    stamp(p,"p2_R")
    for w in range(4):
        for q in range(4): p(f"ds_read_b128 {vr(part+16*(w%2)+4*q,4)}, {v(t)} offset:{w*4096+q*1024}") if w<2 else None
    p("s_waitcnt lgkmcnt(0)")
    for k in range(0,16,2): p(f"v_pk_add_f32 {vr(acc+k,2)}, {vr(part+k,2)}, {vr(part+16+k,2)}")
    for w in range(2,4):
        for q in range(4): p(f"ds_read_b128 {vr(part+16*(w%2)+4*q,4)}, {v(t)} offset:{w*4096+q*1024}")
    p("s_waitcnt lgkmcnt(0)")
    for k in range(0,16,2): p(f"v_pk_add_f32 {vr(acc+k,2)}, {vr(acc+k,2)}, {vr(part+k,2)}")
    for k in range(0,16,2): p(f"v_pk_add_f32 {vr(acc+k,2)}, {vr(acc+k,2)}, {vr(part+16+k,2)}")
    p(f"v_lshrrev_b32 {v(t+1)}, 5, v0"); p(f"v_lshlrev_b32 {v(t+1)}, 3, {v(t+1)}")
    p(f"v_bfe_u32 {v(t+2)}, v0, 2, 2"); p(f"v_add_u32 {v(t+1)}, {v(t+1)}, {v(t+2)}")
    p(f"v_lshlrev_b32 {v(t+1)}, 5, {v(t+1)}")
    p(f"v_and_b32 {v(t+2)}, 3, v0"); p(f"v_lshlrev_b32 {v(t+2)}, 3, {v(t+2)}")
    p(f"v_add_u32 {v(t+1)}, {v(t+1)}, {v(t+2)}")
    p(f"s_and_b32 {s(S_T0)}, {s(S_R64)}, 1"); p(f"s_lshl_b32 {s(S_T0)}, {s(S_T0)}, 9"); p(f"s_add_u32 {s(S_T0)}, {s(S_T0)}, {L_WPHI}")
    p(f"v_add_u32 {v(t+1)}, {s(S_T0)}, {v(t+1)}")
    p(f"ds_read_b64_tr_b16 {vr(wf,2)}, {v(t+1)}")
    p(f"ds_read_b64_tr_b16 {vr(wf+2,2)}, {v(t+1)} offset:128")
    p("s_waitcnt lgkmcnt(0)")
    for k in range(8): p(f"v_cvt_pk_bf16_f32 {v(kz+k)}, {v(acc+2*k)}, {v(acc+2*k+1)}")
    def blockA(b):
        p(f"v_mfma_f32_32x32x16_bf16 {vr(PQ,16)}, {vr(wf,4)}, {vr(qf+4*b,4)}, 0")
        softmax_pm(p,PQ,Pp,Nn,T,KL)
    def blockB(b):
        p(f"v_mfma_f32_32x32x16_bf16 {vr(O,16)}, {vr(kz,4)}, {vr(Pp,4)}, 0")
        p(f"v_mfma_f32_32x32x16_bf16 {vr(O,16)}, {vr(kz+4,4)}, {vr(Nn,4)}, {vr(O,16)}")
        p(f"v_add_f32 {v(t+1)}, {f32(1e-6)}, {v(O+8)}")
        p(f"v_rcp_f32 {v(t+1)}, {v(t+1)}")
        for k in range(8): p(f"v_mul_f32 {v(O+k)}, {v(O+k)}, {v(t+1)}")
        for k in range(4): p(f"v_cvt_pk_bf16_f32 {v(O+8+k)}, {v(O+2*k)}, {v(O+2*k+1)}")
        p(f"v_permlane32_swap_b32 {v(O+8)}, {v(O+10)}")
        p(f"v_permlane32_swap_b32 {v(O+9)}, {v(O+11)}")
        if b==0:
            for k in range(4): p(f"v_mov_b32 {v(O2+k)}, {v(O+8+k)}")
    p("s_waitcnt vmcnt(12)"); stamp(p,"p2_s0"); p("s_barrier")
    blockA(0)
    p("s_waitcnt vmcnt(8)"); p("s_barrier")
    blockB(0)
    p("s_waitcnt vmcnt(4)"); p("s_barrier")
    blockA(1)
    p("s_waitcnt vmcnt(0)"); p("s_barrier")
    p(f"buffer_store_dwordx4 {vr(O2,4)}, {v(vqo)}, {srd(SRD_WS)}, {s(S_KEEP+6)} offen sc1")
    blockB(1)
    p(f"buffer_store_dwordx4 {vr(O+8,4)}, {v(vqo)}, {srd(SRD_WS)}, {s(S_KEEP+6)} offen offset:1024 sc1")
    stamp(p,"p2_mend")
    p("s_barrier")
    R.release(m0)
```

```python
from phase2 import *
from flags import *

def helper_p3_setup(p,R,H):
    m=R.mark(); t0=R.alloc(); t1=R.alloc(); t2=R.alloc(); t3=R.alloc()
    vA=H['vA']; vB=H['vB']
    p(f"s_cmp_ge_u32 {s(S_CT)}, 11")
    p(f"s_cselect_b32 {s(SRD_B)}, {s(S_WO)}, {s(S_W3)}")
    p(f"s_cselect_b32 {s(SRD_B+1)}, {s(S_WO+1)}, {s(S_W3+1)}")
    p(f"s_mov_b32 {s(S_T0)}, 0x80000"); p(f"s_mov_b32 {s(S_T0+1)}, 0x158000")
    p(f"s_cselect_b32 {s(SRD_B+2)}, {s(S_T0)}, {s(S_T0+1)}")
    p(f"s_mov_b32 {s(SRD_B+3)}, 0x20000")
    p(f"s_mov_b32 {s(S_T0)}, 1024"); p(f"s_mov_b32 {s(S_T0+1)}, 2752")
    p(f"s_cselect_b32 {s(S_KEEP+1)}, {s(S_T0)}, {s(S_T0+1)}")
    p(f"s_lshl_b32 {s(S_KEEP+2)}, {s(S_KEEP+1)}, 6")
    p(f"s_sub_u32 {s(S_T0)}, {s(S_CT)}, 11")
    p(f"s_cselect_b32 {s(S_T0)}, {s(S_CT)}, {s(S_T0)}")
    p(f"s_lshl_b32 {s(S_T0)}, {s(S_T0)}, 8")
    p(f"v_lshrrev_b32 {v(t2)}, 4, v0")
    p(f"v_and_b32 {v(t0)}, 15, v0")
    p(f"v_lshlrev_b32 {v(t1)}, 2, {v(t2)}")
    p(f"v_xor_b32 {v(t0)}, {v(t0)}, {v(t1)}")
    p(f"v_lshlrev_b32 {v(t1)}, 4, {v(t0)}")
    p(f"v_add_u32 {v(t1)}, {s(S_T0)}, {v(t1)}")
    p(f"s_lshl_b32 {s(S_T0)}, {s(S_W)}, 4")
    p(f"v_add_u32 {v(t2)}, {s(S_T0)}, {v(t2)}")
    p(f"v_mul_lo_u32 {v(t2)}, {v(t2)}, {s(S_KEEP+1)}")
    p(f"v_add_u32 {v(vB)}, {v(t2)}, {v(t1)}")
    p(f"s_lshl_b32 {s(S_T0)}, {s(S_KEEP+1)}, 2"); p(f"s_sub_u32 {s(S_T0)}, {s(S_T0)}, 1024")
    for q in range(1,4): p(f"v_add_u32 {v(vB+q)}, {s(S_T0)}, {v(vB+q-1)}")
    p(f"s_cmp_ge_u32 {s(S_CT)}, 11")
    p(f"s_cbranch_scc1 L_h3_wo")
    set_srd(p,SRD_A,S_WS,0x200000,X1_OFF)
    p(f"s_mov_b32 {s(S_KEEP+7)}, 7")
    p(f"s_branch L_h3_adone")
    p.label("L_h3_wo")
    set_srd(p,SRD_A,S_WS,0x201000,O_OFF-4096)
    p(f"s_mov_b32 {s(S_KEEP+7)}, 18")
    p(f"v_lshrrev_b32 {v(t0)}, 3, v0")
    p(f"s_lshl_b32 {s(S_T0)}, {s(S_RT)}, 7"); p(f"s_lshl_b32 {s(S_T0+1)}, {s(S_W)}, 5"); p(f"s_add_u32 {s(S_T0)}, {s(S_T0)}, {s(S_T0+1)}")
    p(f"v_add_u32 {v(t0)}, {s(S_T0)}, {v(t0)}")
    p(f"v_lshlrev_b32 {v(t0)}, 5, {v(t0)}")
    p(f"v_lshrrev_b32 {v(t2)}, 4, v0")
    p(f"v_and_b32 {v(t1)}, 7, v0")
    for q in range(4):
        if q&1: p(f"v_or_b32 {v(t3)}, 4, {v(t2)}")
        else: p(f"v_mov_b32 {v(t3)}, {v(t2)}")
        p(f"v_xor_b32 {v(t3)}, {v(t3)}, {v(t1)}")
        p(f"v_lshrrev_b32 {v(vA+q)}, 1, {v(t3)}")
        p(f"v_lshlrev_b32 {v(vA+q)}, 16, {v(vA+q)}")
        p(f"v_and_b32 {v(t3)}, 1, {v(t3)}")
        p(f"v_lshlrev_b32 {v(t3)}, 4, {v(t3)}")
        p(f"v_add_u32 {v(vA+q)}, {v(vA+q)}, {v(t3)}")
        p(f"v_add_u32 {v(vA+q)}, {v(vA+q)}, {v(t0)}")
        p(f"v_add_u32 {v(vA+q)}, {4096+q*256-q*1024}, {v(vA+q)}")
    p.label("L_h3_adone")
    R.release(m)

def p3_issueB(p,H,i):
    p(f"s_add_u32 {s(S_T0)}, {s(S_ROT)}, {i}"); p(f"s_and_b32 {s(S_T0)}, {s(S_T0)}, 7")
    p(f"s_mul_i32 {s(S_T0+1)}, {s(S_T0)}, {s(S_KEEP+2)}")
    dma_slab(p,H['vB'],SRD_B,s(S_T0+1),SB[i%4]); return 4
def p3_issueA(p,H,i):
    p(f"s_add_u32 {s(S_T0)}, {s(S_ROT)}, {i}"); p(f"s_and_b32 {s(S_T0)}, {s(S_T0)}, 7")
    p(f"s_lshl_b32 {s(S_T0)}, {s(S_T0)}, {s(S_KEEP+7)}")
    p(f"s_add_u32 m0, {s(S_KEEP)}, {SA[i%4]}")
    for q in range(4):
        off=f" offset:{q*1024}" if q else ""
        p(f"buffer_load_dwordx4 {v(H['vA']+q)}, {srd(SRD_A)}, {s(S_T0)} offen{off} sc1 lds")
    return 4

def ring_loop(p,R,n,issueA,issueB,npreB,stats=None,slotA=None,tail_hook=None,first_stamp=None):
    cnt=[]
    def iss(i):
        if i>=n: return
        cnt.extend([i]*issueA(p,i))
        if i>=npreB: cnt.extend([i]*issueB(p,i))
    iss(0); iss(1)
    for i in range(n):
        last=max(k for k,t in enumerate(cnt) if t==i)
        p(f"s_waitcnt vmcnt({len(cnt)-1-last})")
        if i==0 and first_stamp: stamp(p,first_stamp)
        p("s_barrier")
        iss(i+2)
        if tail_hook:
            k=tail_hook(p,i); cnt.extend([None]*k)
        if stats: stats.accumulate(p,slotA(i))

def helper_p3(p,R,H,stats,tail_hook=None):
    st=None
    if stats:
        st=Stats(R); st.init(p)
    p("s_barrier")
    ring_loop(p,R,8,lambda pp,i:p3_issueA(pp,H,i),lambda pp,i:p3_issueB(pp,H,i),4,stats=st,slotA=lambda i:SA[i%4],tail_hook=tail_hook,first_stamp="p3_w0")
    if st: st.finish(p,R)

def compute_p3(p,R,G,X,kind,PA):
    p.comment(f"==== P3 compute: {kind}")
    m0=R.mark()
    p(f"s_mov_b32 {s(S_SWM)}, 0")
    if kind=='W3': p(f"s_mov_b32 {s(S_SWN)}, {s(S_WR)}")
    else: p(f"s_mov_b32 {s(S_SWN)}, 0")
    G.setup(p,R); X.setup(p,R)
    push3_prepare(p,R,kind,PA,S_RT,S_CT)
    vGo=R.alloc(1)
    if kind=='W3':
        for k in range(4): p(f"v_mov_b32 {v(G.fe[0]+k)}, 0x3f803f80")
        rowmajor_voff(p,R,vGo,HID_PITCH)
        c_row_base(p,S_KEEP)
        p(f"s_mul_i32 {s(S_KEEP)}, {s(S_KEEP)}, {HID_PITCH}")
        p(f"s_lshl_b32 {s(S_T0)}, {s(S_CT)}, 8"); p(f"s_add_u32 {s(S_KEEP)}, {s(S_KEEP)}, {s(S_T0)}")
        p(f"s_lshl_b32 {s(S_T0)}, {s(S_WC)}, 7"); p(f"s_add_u32 {s(S_KEEP)}, {s(S_KEEP)}, {s(S_T0)}")
        p(f"s_add_u32 {s(S_KEEP)}, {s(S_KEEP)}, {HID_OFF:#x}")
        p(f"s_mov_b32 {s(S_KEEP+7)}, 0xffff")
    else:
        rowmajor_voff(p,R,vGo,1024)
        c_row_base(p,S_KEEP)
        p(f"s_lshl_b32 {s(S_KEEP)}, {s(S_KEEP)}, 10")
        p(f"s_sub_u32 {s(S_T0)}, {s(S_CT)}, 11"); p(f"s_lshl_b32 {s(S_T0)}, {s(S_T0)}, 8"); p(f"s_add_u32 {s(S_KEEP)}, {s(S_KEEP)}, {s(S_T0)}")
        p(f"s_lshl_b32 {s(S_T0)}, {s(S_WC)}, 7"); p(f"s_add_u32 {s(S_KEEP)}, {s(S_KEEP)}, {s(S_T0)}")
        p(f"s_add_u32 {s(S_KEEP)}, {s(S_KEEP)}, {A_OFF:#x}")
        p(f"s_mov_b32 {s(S_KEEP+7)}, -1")
    poll_own(p,R,f"p3{kind}",1,S_KEEP+7)
    stamp(p,"p3_flags")
    p("s_barrier")
    G.main(p,[SA[i%4] for i in range(8)],[SB[i%4] for i in range(8)],"TT",extra='colsum' if kind=='W3' else None)
    stamp(p,"p3_mend")
    if kind=='W3': ln_gelu_epilogue(p,R,G,X,vGo,HID_PITCH,S_KEEP,SRD_WS)
    else: plain_epilogue(p,R,G,X,vGo,1024,S_KEEP,SRD_WS)
    R.release(m0)

def p4_issueB(p,HP,g):
    p(f"s_mov_b32 {s(S_T0)}, {g<<17:#x}")
    dma_slab(p,HP['vW'],SRD_B,s(S_T0),SB[g%4]); return 4
def p4_issueA(p,vAh,g):
    p(f"s_mov_b32 {s(S_T0)}, {g*256}")
    p(f"s_add_u32 m0, {s(S_KEEP)}, {SA[g%4]}")
    for q in range(4):
        off=f" offset:{q*1024}" if q else ""
        p(f"buffer_load_dwordx4 {v(vAh+q)}, {srd(SRD_A)}, {s(S_T0)} offen{off} sc1 lds")
    return 4
def helper_p4(p,R,HP):
    vAh=R.alloc(4)
    a64_voffs(p,R,vAh,HID_PITCH)
    set_srd(p,SRD_A,S_WS,2048*HID_PITCH,HID_OFF)
    p("s_barrier")
    ring_loop(p,R,11,lambda pp,g:p4_issueA(pp,vAh,g),lambda pp,g:p4_issueB(pp,HP,g),4,first_stamp="p4_w0")

def compute_p4(p,R,G,X,x1keep):
    p.comment("==== P4 compute")
    m0=R.mark()
    G.setup(p,R); X.setup(p,R)
    vo=R.alloc(1); ar=R.alloc(8,4); h2=R.alloc(8,4); pk=R.alloc(8,2); fa=R.alloc(8,2); fb=R.alloc(8,2); fc=R.alloc(8,2); gg=R.alloc(2,2); vg=R.alloc(1)
    tile64_voff(p,R,vo)
    tile64_soff(p,S_KEEP+5)
    p(f"v_lshrrev_b32 {v(vg)}, 2, v0"); p(f"v_lshlrev_b32 {v(vg)}, 2, {v(vg)}")
    p(f"s_mov_b32 {s(S_KEEP+7)}, 0xfff")
    poll_own(p,R,"p4",2,S_KEEP+7)
    stamp(p,"p4_flags")
    p("s_barrier")
    p(f"s_add_u32 {s(S_T0)}, {s(S_KEEP+5)}, {A_OFF:#x}")
    p(f"buffer_load_dwordx4 {vr(ar,4)}, {v(vo)}, {srd(SRD_WS)}, {s(S_T0)} offen sc1")
    p(f"s_add_u32 {s(S_T0)}, {s(S_T0)}, {16*1024}")
    p(f"buffer_load_dwordx4 {vr(ar+4,4)}, {v(vo)}, {srd(SRD_WS)}, {s(S_T0)} offen sc1")
    p(f"s_lshl_b32 {s(S_T0)}, {s(S_R64)}, 1"); p(f"s_add_u32 {s(S_T0)}, {s(S_T0)}, {s(S_WR)}"); p(f"s_lshl_b32 {s(S_T0)}, {s(S_T0)}, 7")
    p(f"s_add_u32 {s(S_T0)}, {s(S_T0)}, {G_OFF:#x}")
    p(f"buffer_load_dword {v(gg)}, {v(vg)}, {srd(SRD_WS)}, {s(S_T0)} offen sc1")
    p(f"buffer_load_dword {v(gg+1)}, {v(vg)}, {srd(SRD_WS)}, {s(S_T0)} offen offset:64 sc1")
    G.main(p,[8]*10+[6],[SA[g%4] for g in range(11)],[SB[g%4] for g in range(11)])
    stamp(p,"p4_mend")
    X.roundtrip(p,G.acc,pk,h2)
    set_srd(p,SRD_T,S_OUT,0x200000)
    p("s_waitcnt vmcnt(0) lgkmcnt(0)")
    for t in range(2):
        unpack8(p,fa,x1keep+4*t); unpack8(p,fb,h2+4*t); unpack8(p,fc,ar+4*t)
        for k in range(0,8,2): p(f"v_pk_add_f32 {vr(fa+k,2)}, {vr(fa+k,2)}, {vr(fb+k,2)}")
        for k in range(4): p(f"v_cvt_pk_bf16_f32 {v(pk+k)}, {v(fa+2*k)}, {v(fa+2*k+1)}")
        unpack8(p,fa,pk)
        for k in range(0,8,2): p(f"v_pk_add_f32 {vr(fc+k,2)}, {vr(fc+k,2)}, {vr(fa+k,2)} neg_lo:[0,1] neg_hi:[0,1]")
        sel = "op_sel:[0,0,0] op_sel_hi:[1,0,1]" if t==0 else "op_sel:[0,1,0] op_sel_hi:[1,1,1]"
        for k in range(0,8,2): p(f"v_pk_fma_f32 {vr(fa+k,2)}, {vr(fc+k,2)}, {vr(gg,2)}, {vr(fa+k,2)} {sel}")
        for k in range(4): p(f"v_cvt_pk_bf16_f32 {v(h2+4*t+k)}, {v(fa+2*k)}, {v(fa+2*k+1)}")
        if t: p(f"s_add_u32 {s(S_KEEP+5)}, {s(S_KEEP+5)}, {16*1024}")
        p(f"buffer_store_dwordx4 {vr(h2+4*t,4)}, {v(vo)}, {srd(SRD_T)}, {s(S_KEEP+5)} offen")
    R.release(m0)
```

```python
import sys
from phase34 import *
KNAME="gated_mix__linear_kernel_hedgehog__mixer_s_mlp__prompt_kernel"

def prologue(p):
    p("s_cmp_ge_u32 s2, 256")
    p("s_cbranch_scc1 L_end")
    p("s_load_dwordx16 s[8:23], s[0:1], 0")
    p("s_load_dwordx8 s[24:31], s[0:1], 64")
    p("s_load_dwordx2 s[32:33], s[0:1], 96")
    p("v_lshrrev_b32 v1, 6, v0")
    p("v_and_b32 v0, 63, v0")
    p(f"v_readfirstlane_b32 {s(S_WAVE)}, v1")
    p(f"s_and_b32 {s(S_X)}, s2, 7")
    p(f"s_lshr_b32 {s(S_J)}, s2, 3")
    p(f"s_and_b32 {s(S_T0)}, {s(S_X)}, 1")
    p(f"s_lshl_b32 {s(S_T0)}, {s(S_T0)}, 3")
    p(f"s_and_b32 {s(S_T0+1)}, {s(S_J)}, 7")
    p(f"s_add_u32 {s(S_RT)}, {s(S_T0)}, {s(S_T0+1)}")
    p(f"s_lshr_b32 {s(S_T0)}, {s(S_X)}, 1")
    p(f"s_lshl_b32 {s(S_T0)}, {s(S_T0)}, 2")
    p(f"s_lshr_b32 {s(S_T0+2)}, {s(S_J)}, 3")
    p(f"s_add_u32 {s(S_CT)}, {s(S_T0)}, {s(S_T0+2)}")
    p(f"s_lshl_b32 {s(S_T0+2)}, {s(S_T0+2)}, 1")
    p(f"s_add_u32 {s(S_ROT)}, {s(S_T0+1)}, {s(S_T0+2)}")
    p(f"s_and_b32 {s(S_ROT)}, {s(S_ROT)}, 7")
    p("s_waitcnt lgkmcnt(0)")
    stamp(p,"karg")
    set_srd(p,SRD_WS,S_WS,WS_SIZE)
    p(f"s_add_u32 {s(S_T0)}, {s(S_WS)}, {EPOCH_OFF:#x}")
    p(f"s_addc_u32 {s(S_T0+1)}, {s(S_WS+1)}, 0")
    p(f"s_load_dword {s(S_TAG)}, {sr(S_T0,2)}, 0")
    p(f"s_and_b32 {s(S_WC)}, {s(S_WAVE)}, 1")
    p(f"s_bfe_u32 {s(S_WR)}, {s(S_WAVE)}, 0x10001")
    p(f"s_and_b32 {s(S_W)}, {s(S_WAVE)}, 3")
    p("s_waitcnt lgkmcnt(0)")
    p(f"s_mul_i32 {s(S_TAG)}, {s(S_TAG)}, 0x9e3779b1")
    p(f"s_add_u32 {s(S_TAG)}, {s(S_TAG)}, 0x7f4a7c15")
    stamp(p,"epoch")
    p(f"s_cmp_ge_u32 {s(S_WAVE)}, 4")
    p("s_cbranch_scc1 L_helper")

def set_epoch(p,R):
    m=R.mark(); a=R.alloc(1); d=R.alloc(1)
    p(f"v_mov_b32 {v(a)}, 0")
    p(f"v_mov_b32 {v(d)}, {s(S_TAG)}")
    p(f"s_mov_b32 {s(S_T0)}, {EPOCH_OFF:#x}")
    p("s_mov_b64 exec, 1")
    p(f"buffer_store_dword {v(d)}, {v(a)}, {srd(SRD_WS)}, {s(S_T0)} offen sc1")
    p("s_mov_b64 exec, -1")
    R.release(m)

def build(stop_after=4):
    progs=[]
    lim=250 if STAMP else 256
    pe=Prog("entry")
    if STAMP:
        for k in range(10): pe(f"s_mov_b32 s{80+2*k}, 0")
    stamp(pe,0); stamp(pe,1); prologue(pe); progs.append(pe)
    R=Regs(2,lim)
    x1keep=R.alloc(8,4); PA=R.alloc(1)
    mph=R.mark()
    G=G128(R); X=Xpose128(R)
    pc=Prog("c_dispatch")
    pc(f"s_cmp_lt_u32 {s(S_CT)}, 4"); pc("s_cbranch_scc1 L_c1_q")
    pc(f"s_cmp_ge_u32 {s(S_CT)}, 12"); pc("s_cbranch_scc1 L_c1_w1")
    progs.append(pc)
    pk=Prog("c1_kv"); push1_prepare(pk,R,'KV',PA); compute_p1_KV(pk,R,G,X); pk("s_branch L_c1_done"); progs.append(pk)
    pq=Prog("c1_q"); pq.label("L_c1_q"); push1_prepare(pq,R,'Q',PA); compute_p1_Q(pq,R,G,X); pq("s_branch L_c1_done"); progs.append(pq)
    pw=Prog("c1_w1"); pw.label("L_c1_w1"); push1_prepare(pw,R,'W1',PA); compute_p1_W1(pw,R,G,X); progs.append(pw)
    pd=Prog("c1_done"); pd.label("L_c1_done")
    stamp(pd,"e1_epi"); pd("s_waitcnt vmcnt(0)"); stamp(pd,"e1_drain"); pd("s_barrier"); stamp(pd,"e1_bar")
    do_push(pd,R,PA,0,"p1",started=True)
    def finish(p,last):
        stamp_dump(p); p("s_branch L_end")
    if stop_after==1: finish(pd,1)
    progs.append(pd)
    R.release(mph)
    if stop_after>=2:
        G6=G64(R); X6=Xpose64(R)
        p2=Prog("c2"); compute_p2(p2,R,G6,X6,x1keep,PA)
        stamp(p2,"e2_epi"); p2("s_waitcnt vmcnt(0)"); p2("s_barrier"); stamp(p2,"e2_bar")
        do_push(p2,R,PA,1,"p2")
        if stop_after==2: finish(p2,2)
        progs.append(p2)
        R.release(mph)
    if stop_after>=3:
        G=G128(R); X=Xpose128(R)
        p3=Prog("c3_dispatch")
        p3(f"s_cmp_eq_u32 {s(S_CT)}, 15"); p3("s_cbranch_scc1 L_c3_idle")
        p3(f"s_cmp_ge_u32 {s(S_CT)}, 11"); p3("s_cbranch_scc1 L_c3_wo")
        progs.append(p3)
        pa=Prog("c3_w3"); compute_p3(pa,R,G,X,'W3',PA); pa("s_branch L_c3_done"); progs.append(pa)
        pb=Prog("c3_wo"); pb.label("L_c3_wo"); compute_p3(pb,R,G,X,'Wo',PA); progs.append(pb)
        pz=Prog("c3_done"); pz.label("L_c3_done")
        stamp(pz,"e3_epi"); pz("s_waitcnt vmcnt(0)"); pz("s_barrier"); stamp(pz,"e3_bar")
        do_push(pz,R,PA,2,"p3")
        pz("s_branch L_c4")
        pz.label("L_c3_idle")
        pz(f"s_cmp_lg_u32 {s(S_RT)}, 0"); pz("s_cbranch_scc1 L_c4")
        pz(f"s_cmp_lg_u32 {s(S_WAVE)}, 1"); pz("s_cbranch_scc1 L_c4")
        m=R.mark(); a=R.alloc(1); d=R.alloc(4,4)
        pz(f"v_lshlrev_b32 {v(a)}, 4, v0")
        pz(f"s_mov_b32 {s(S_T0)}, {STARTED:#x}"); pz(f"s_mov_b32 {s(S_T0+1)}, 0x40000")
        pz.label("L_ep_poll")
        pz(f"buffer_load_dwordx4 {vr(d,4)}, {v(a)}, {srd(SRD_WS)}, {s(S_T0)} offen sc1")
        pz("s_waitcnt vmcnt(0)")
        for k in range(4): pz(f"v_xor_b32 {v(d+k)}, {s(S_TAG)}, {v(d+k)}")
        pz(f"v_or_b32 {v(d)}, {v(d)}, {v(d+1)}"); pz(f"v_or_b32 {v(d+2)}, {v(d+2)}, {v(d+3)}"); pz(f"v_or_b32 {v(d)}, {v(d)}, {v(d+2)}")
        pz(f"v_cmp_ne_u32 vcc, 0, {v(d)}")
        pz(f"s_cmp_eq_u64 vcc, 0"); pz("s_cbranch_scc1 L_ep_go")
        pz(f"s_sub_u32 {s(S_T0+1)}, {s(S_T0+1)}, 1"); pz(f"s_cmp_lg_u32 {s(S_T0+1)}, 0"); pz("s_cbranch_scc1 L_ep_poll")
        pz("s_branch L_c4")
        pz.label("L_ep_go")
        set_epoch(pz,R)
        R.release(m)
        pz.label("L_c4")
        if stop_after==3: finish(pz,3)
        progs.append(pz)
        R.release(mph)
    if stop_after>=4:
        G6=G64(R); X6=Xpose64(R)
        p4=Prog("c4"); compute_p4(p4,R,G6,X6,x1keep)
        stamp(p4,"end"); stamp_dump(p4); p4("s_branch L_end")
        progs.append(p4)
    vmax=R.hi
    RH=Regs(2,lim)
    HP={}
    ph=Prog("h1"); ph.label("L_helper")
    H=helper_p1_setup(ph,RH)
    t=RH.alloc(1)
    ph(f"v_lshlrev_b32 {v(t)}, 4, v0")
    ph(f"s_cmp_lt_u32 {s(S_CT)}, 4"); ph("s_cbranch_scc0 L_h1_nogate")
    ph(f"s_cmp_eq_u32 {s(S_W)}, 0"); ph("s_cbranch_scc0 L_h1_small_done")
    set_srd(ph,SRD_T,S_GW,1024)
    ph(f"s_mov_b32 m0, {L_GATE}")
    ph(f"buffer_load_dwordx4 {v(t)}, {srd(SRD_T)}, 0 offen lds")
    ph("s_branch L_h1_small_done")
    ph.label("L_h1_nogate")
    ph(f"s_cmp_lt_u32 {s(S_CT)}, 12"); ph("s_cbranch_scc0 L_h1_small_done")
    ph(f"s_cmp_lt_u32 {s(S_W)}, 2"); ph("s_cbranch_scc0 L_h1_small_done")
    set_srd(ph,SRD_T,S_WPHI,16384)
    ph(f"s_sub_u32 {s(S_T0)}, {s(S_CT)}, 4"); ph(f"s_lshl_b32 {s(S_T0)}, {s(S_T0)}, 11")
    ph(f"s_lshl_b32 {s(S_T0+1)}, {s(S_W)}, 10"); ph(f"s_add_u32 {s(S_T0)}, {s(S_T0)}, {s(S_T0+1)}")
    ph(f"s_add_u32 m0, {s(S_T0+1)}, {L_WPHI}")
    ph(f"buffer_load_dwordx4 {v(t)}, {srd(SRD_T)}, {s(S_T0)} offen lds")
    ph.label("L_h1_small_done")
    ph(f"s_cmp_ge_u32 {s(S_CT)}, 12"); ph("s_cbranch_scc1 L_h1_stats")
    progs.append(ph)
    HP['vW']=RH.alloc(4)
    mk=RH.mark()
    def init_hook(p):
        if stop_after>=2:
            p24_ids(p); b64_voffs(p,RH,HP['vW'])
    def pf(p,i):
        if stop_after>=2 and i>=5: return w2_prefetch(p,HP,i-5)
        return 0
    pa=Prog("h1_plain"); helper_p1_loop(pa,RH,H,False,pf,init_hook); pa("s_branch L_h1_done"); progs.append(pa); RH.release(mk)
    pb=Prog("h1_stats"); pb.label("L_h1_stats"); helper_p1_loop(pb,RH,H,True,pf,init_hook); progs.append(pb); RH.release(mk)
    pz=Prog("h1_done"); pz.label("L_h1_done")
    stamp(pz,"m1_end"); pz("s_barrier")
    if stop_after>=2: w2_prefetch(pz,HP,3)
    pz("s_barrier"); pz("s_barrier"); stamp(pz,"e1_bar")
    if stop_after>=2:
        helper_p2(pz,RH,HP)
        pz("s_waitcnt vmcnt(0)")
        stamp(pz,"e2_epi"); pz("s_barrier"); stamp(pz,"e2_bar")
        if stop_after>=3:
            pz(f"s_cmp_eq_u32 {s(S_CT)}, 15"); pz("s_cbranch_scc1 L_h3_nopf")
            helper_p3_setup(pz,RH,H)
            for i in range(4): p3_issueB(pz,H,i)
            pz.label("L_h3_nopf")
    progs.append(pz)
    if stop_after>=3:
        p3=Prog("h3_dispatch")
        p3(f"s_cmp_eq_u32 {s(S_CT)}, 15"); p3("s_cbranch_scc1 L_h3_idle")
        p3(f"s_cmp_ge_u32 {s(S_CT)}, 11"); p3("s_cbranch_scc1 L_h3_plain")
        progs.append(p3)
        mk=RH.mark()
        pa=Prog("h3_stats"); helper_p3(pa,RH,H,True); pa("s_branch L_h3_done"); progs.append(pa); RH.release(mk)
        pb=Prog("h3_plain"); pb.label("L_h3_plain"); helper_p3(pb,RH,H,False); progs.append(pb); RH.release(mk)
        pz=Prog("h3_done"); pz.label("L_h3_done")
        pz("s_barrier")
        if stop_after>=4:
            set_srd(pz,SRD_B,S_W4,0x158000)
            for g in range(4): p4_issueB(pz,HP,g)
        pz("s_barrier")
        if stop_after>=4:
            pz("s_branch L_h4")
        else: pz("s_branch L_h3_end")
        pz.label("L_h3_idle")
        if stop_after>=4:
            set_srd(pz,SRD_B,S_W4,0x158000)
            for g in range(4): p4_issueB(pz,HP,g)
            pz.label("L_h4")
        pz.label("L_h3_end")
        progs.append(pz)
    if stop_after>=4:
        p4=Prog("h4"); helper_p4(p4,RH,HP); progs.append(p4)
    pf_=Prog("h_end"); stamp_dump(pf_); progs.append(pf_)
    pend=Prog("end"); pend.label("L_end"); pend("s_endpgm"); progs.append(pend)
    vmax=max(vmax,RH.hi)
    lines=[]; errs=[]
    for pr in progs:
        o,e=fix_hazards(pr); lines+=o; errs+=e
    if errs:
        for e in errs[:40]: print("ERR",e)
        raise SystemExit(1)
    return lines,vmax

def emit(path,lines,vmax,header_from="gated_mix__linear_kernel_hedgehog__mixer_s_mlp__prompt.s.ref"):
    hdr=[l for l in open(header_from).read().split("\n") if l.startswith(";") and "@launch" not in l and "Override launch" not in l and "grid=ceil" not in l]
    nv=256 if STAMP else (vmax+7)//8*8
    t="\n".join(hdr)+"\n"
    t+=f"; @launch grid=(256,1,1) block=(512,1,1) lds={LDS_SIZE}\n"
    t+='.amdgcn_target "amdgcn-amd-amdhsa--gfx950"\n.text\n'
    t+=f".globl {KNAME}\n.p2align 8\n.type {KNAME},@function\n{KNAME}:\n"
    t+="\n".join(lines)+"\n"
    t+=f""".section .rodata,"a"
.p2align 6
.amdhsa_kernel {KNAME}
  .amdhsa_next_free_vgpr {nv}
  .amdhsa_next_free_sgpr 100
  .amdhsa_accum_offset {nv}
  .amdhsa_group_segment_fixed_size 0
  .amdhsa_kernarg_size 104
  .amdhsa_user_sgpr_count 2
  .amdhsa_user_sgpr_kernarg_segment_ptr 1
  .amdhsa_system_sgpr_workgroup_id_x 1
  .amdhsa_float_denorm_mode_32 3
.end_amdhsa_kernel
"""
    open(path,"w").write(t)

if __name__=="__main__":
    lines,vmax=build(int(os.environ.get("STOP","4")))
    out=sys.argv[1] if len(sys.argv)>1 else "k.s"
    emit(out,lines,vmax)
    print("vgprs",vmax,"lines",len(lines))
```

```python
from helper import *
L_KZ=M_MISC+12288
L_WF=L_WPHI2
C_KZ=L_CNT+4*6
C_KVF=L_CNT+4*7
S_HD=S_K+6
S_KP=98

def att_ids(p):
    p(f"s_mov_b32 {s(S_HD)}, {s(S_R64)}")

def push_o(p,R,PA):
    m=R.mark(); a=R.alloc(); b=R.alloc(); t=R.alloc(); rt=R.alloc(); ct=R.alloc()
    p(f"v_bfe_u32 {v(rt)}, v0, 2, 1"); p(f"s_lshl_b32 {s(S_T0)}, {s(S_C8)}, 1"); p(f"v_add_u32 {v(rt)}, {s(S_T0)}, {v(rt)}")
    p(f"v_and_b32 {v(ct)}, 3, v0"); p(f"v_add_u32 {v(ct)}, 11, {v(ct)}")
    tile3_wg(p,a,rt,ct,t)
    p(f"v_mov_b32 {v(b)}, {s(S_HD)}")
    flag_addr(p,PA,a,b,FL(1))
    R.release(m)

def kv_reduce(p,R,vl):
    m=R.mark()
    part=R.alloc(32,4); acc=R.alloc(16,4); c10=R.alloc(1); c01=R.alloc(1); t=R.alloc(1); kz=R.alloc(8,4)
    p(f"v_mov_b32 {v(c10)}, 0x00003f80"); p(f"v_mov_b32 {v(c01)}, 0x3f800000")
    p(f"s_lshl_b32 {s(S_T0)}, {s(S_HD)}, 4"); p(f"s_lshl_b32 {s(S_T0+1)}, {s(S_W)}, 2")
    p(f"s_add_u32 {s(S_T0)}, {s(S_T0)}, {s(S_T0+1)}"); p(f"s_lshl_b32 {s(S_T0)}, {s(S_T0)}, 11"); p(f"s_add_u32 {s(S_T0)}, {s(S_T0)}, {KVP_OFF:#x}")
    p(f"s_mov_b32 {s(S_KP)}, {s(S_T0)}")
    yield 'addr'
    p(f"s_add_u32 {s(S_T0+1)}, {s(S_KP)}, 4096")
    for i in range(4):
        for tt in range(2):
            off=i*2048+tt*1024; so=S_KP if off<4096 else S_T0+1
            p(f"buffer_load_dwordx4 {vr(part+8*i+4*tt,4)}, {v(vl)}, {srd(SRD_WS)}, {s(so)} offen offset:{off%4096} sc1")
    wait=yield 'loads'
    p(f"s_waitcnt {wait}")
    for r in range(8):
        for i in range(4):
            d=part+8*i+r
            if i==0:
                p(f"v_lshlrev_b32 {v(acc+2*r)}, 16, {v(d)}"); p(f"v_and_b32 {v(acc+2*r+1)}, 0xffff0000, {v(d)}")
            else:
                p(f"v_dot2_f32_bf16 {v(acc+2*r)}, {v(d)}, {v(c10)}, {v(acc+2*r)}")
                p(f"v_dot2_f32_bf16 {v(acc+2*r+1)}, {v(d)}, {v(c01)}, {v(acc+2*r+1)}")
    RED=SA[0]
    p(f"v_add_u32 {v(t)}, {s(K_A)}, {v(vl)}")
    for k in range(4): p(f"ds_write_b128 {v(t)}, {vr(acc+4*k,4)} offset:{RED+k*1024}")
    p("s_waitcnt lgkmcnt(0)")
    lds_add(p,R,C_RED)
    lds_spin(p,R,4,const=C_RED)
    p(f"s_lshl_b32 {s(S_T0)}, {s(S_W)}, 10"); p(f"v_add_u32 {v(t)}, {s(S_T0)}, {v(vl)}")
    for w in range(4): p(f"ds_read_b128 {vr(part+4*w,4)}, {v(t)} offset:{RED+w*4096}")
    p("s_waitcnt lgkmcnt(0)")
    for w in range(1,4):
        p(f"v_pk_add_f32 {vr(part,2)}, {vr(part,2)}, {vr(part+4*w,2)}"); p(f"v_pk_add_f32 {vr(part+2,2)}, {vr(part+2,2)}, {vr(part+4*w+2,2)}")
    p(f"v_cvt_pk_bf16_f32 {v(kz)}, {v(part)}, {v(part+1)}"); p(f"v_cvt_pk_bf16_f32 {v(kz+1)}, {v(part+2)}, {v(part+3)}")
    p(f"s_lshr_b32 {s(S_T0)}, {s(S_W)}, 1"); p(f"s_lshl_b32 {s(S_T0)}, {s(S_T0)}, 10"); p(f"s_and_b32 {s(S_T0+1)}, {s(S_W)}, 1"); p(f"s_lshl_b32 {s(S_T0+1)}, {s(S_T0+1)}, 3")
    p(f"s_add_u32 {s(S_T0)}, {s(S_T0)}, {s(S_T0+1)}"); p(f"s_add_u32 {s(S_T0)}, {s(S_T0)}, {L_KZ}")
    p(f"v_add_u32 {v(t)}, {s(S_T0)}, {v(vl)}")
    p(f"ds_write_b64 {v(t)}, {vr(kz,2)}")
    p("s_waitcnt lgkmcnt(0)")
    lds_add(p,R,C_KZ)
    R.release(m)
    yield 'done'

def att_blocks(p,R,wavx):
    qf=R.alloc(4,4); kz=R.alloc(8,4); wf=R.alloc(4,4); PQ=R.alloc(16,4); T=R.alloc(20,2); Pp=R.alloc(4,4); Nn=R.alloc(4,4); KL=R.alloc(2,2)
    O=R.alloc(16,4); vqo=R.alloc(1); t=R.alloc(3)
    p(f"v_and_b32 {v(vqo)}, 31, v0"); p(f"v_lshlrev_b32 {v(vqo)}, 5, {v(vqo)}")
    p(f"v_lshrrev_b32 {v(t)}, 5, v0"); p(f"v_lshlrev_b32 {v(t)}, 4, {v(t)}"); p(f"v_add_u32 {v(vqo)}, {v(vqo)}, {v(t)}")
    p(f"s_lshl_b32 {s(S_T0)}, {s(S_HD)}, 16"); p(f"s_lshl_b32 {s(S_T0+1)}, {s(S_C8)}, 13")
    p(f"s_add_u32 {s(S_T0)}, {s(S_T0)}, {s(S_T0+1)}"); p(f"s_lshl_b32 {s(S_T0+1)}, {s(wavx)}, 10"); p(f"s_add_u32 {s(S_T0+4)}, {s(S_T0)}, {s(S_T0+1)}")
    p(f"s_add_u32 {s(K_O)}, {s(S_T0+4)}, {O_OFF:#x}")
    p(f"v_mov_b32 {v(KL)}, {f32(LOG2E)}"); p(f"v_mov_b32 {v(KL+1)}, {f32(-LOG2E)}")
    p(f"v_lshrrev_b32 {v(t+1)}, 5, v0"); p(f"v_lshlrev_b32 {v(t+1)}, 3, {v(t+1)}"); p(f"v_bfe_u32 {v(t+2)}, v0, 2, 2")
    p(f"v_add_u32 {v(t+1)}, {v(t+1)}, {v(t+2)}"); p(f"v_lshlrev_b32 {v(t+1)}, 5, {v(t+1)}")
    p(f"v_and_b32 {v(t+2)}, 3, v0"); p(f"v_lshlrev_b32 {v(t+2)}, 3, {v(t+2)}"); p(f"v_add_u32 {v(t+1)}, {v(t+1)}, {v(t+2)}")
    p(f"s_and_b32 {s(S_T0)}, {s(S_HD)}, 1"); p(f"s_lshl_b32 {s(S_T0)}, {s(S_T0)}, 9"); p(f"s_add_u32 {s(S_T0)}, {s(S_T0)}, {L_WF}")
    p(f"v_add_u32 {v(t+1)}, {s(S_T0)}, {v(t+1)}")
    yield 'addr'
    p(f"s_sub_u32 {s(S_T0+5)}, {s(K_O)}, {O_OFF-Q_OFF:#x}")
    p(f"buffer_load_dwordx4 {vr(qf,4)}, {v(vqo)}, {srd(SRD_WS)}, {s(S_T0+5)} offen sc1")
    wait=yield 'load'
    p(f"ds_read_b64_tr_b16 {vr(wf,2)}, {v(t+1)}"); p(f"ds_read_b64_tr_b16 {vr(wf+2,2)}, {v(t+1)} offset:128")
    p(f"s_waitcnt {wait} lgkmcnt(0)")
    p(f"v_mfma_f32_32x32x16_bf16 {vr(PQ,16)}, {vr(wf,4)}, {vr(qf,4)}, 0")
    softmax_pm(p,PQ,Pp,Nn,T,KL)
    yield 'soft'
    lds_spin(p,R,4,const=C_KZ)
    p(f"v_lshlrev_b32 {v(t)}, 4, v0"); p(f"v_add_u32 {v(t)}, {L_KZ}, {v(t)}")
    p(f"ds_read_b128 {vr(kz,4)}, {v(t)}"); p(f"ds_read_b128 {vr(kz+4,4)}, {v(t)} offset:1024")
    p("s_waitcnt lgkmcnt(0)")
    p(f"v_mfma_f32_32x32x16_bf16 {vr(O,16)}, {vr(kz,4)}, {vr(Pp,4)}, 0")
    p(f"v_mfma_f32_32x32x16_bf16 {vr(O,16)}, {vr(kz+4,4)}, {vr(Nn,4)}, {vr(O,16)}")
    d=PQ
    p(f"v_add_f32 {v(t+1)}, {f32(1e-6)}, {v(O+8)}"); p(f"v_rcp_f32 {v(t+1)}, {v(t+1)}")
    for k in range(8): p(f"v_mul_f32 {v(O+k)}, {v(O+k)}, {v(t+1)}")
    for k in range(4): p(f"v_cvt_pk_bf16_f32 {v(d+k)}, {v(O+2*k)}, {v(O+2*k+1)}")
    p(f"v_permlane32_swap_b32 {v(d)}, {v(d+2)}"); p(f"v_permlane32_swap_b32 {v(d+1)}, {v(d+3)}")
    p(f"buffer_store_dwordx4 {vr(d,4)}, {v(vqo)}, {srd(SRD_WS)}, {s(K_O)} offen sc1")
    yield 'apply'

def o_arrive(p,R,PAo,name,nowait=False):
    p(f"s_mov_b32 {s(S_T0+4)}, {s(S_MASK)}"); p(f"s_mov_b32 {s(S_T0+5)}, {s(S_MASK+1)}")
    p(f"s_mov_b32 {s(S_MASK)}, 0xff"); p(f"s_mov_b32 {s(S_MASK+1)}, 0")
    arrive_push(p,R,C_O,8,PAo,name,nowait=nowait)
    p(f"s_mov_b32 {s(S_MASK)}, {s(S_T0+4)}"); p(f"s_mov_b32 {s(S_MASK+1)}, {s(S_T0+5)}")
```

```python
from dsl import *
import os, struct
H_OFF   = 0x000000
Q_OFF   = 0x200000
KVP_OFF = 0x400000
X1_OFF  = 0x600000
O_OFF   = 0x800000
HID_OFF = 0xA00000
HID_PITCH = 2816
A_OFF   = 0x1000000
G_OFF   = 0x1200000
ST1_OFF = 0x1204000
ST_OFF  = 0x1240000
FLAG_OFF= 0x1210000
def FL(ph): return FLAG_OFF+ph*0x8000
STARTED = FLAG_OFF+0x28000
EPOCH_OFF=0x123c000
DBG_OFF = 0x1300000
WS_SIZE = 0x1400000
SA=[i*16384 for i in range(4)]
SB=[65536+i*16384 for i in range(4)]
M_SCR=131072
M_MISC=147456
L_GATE=M_MISC
L_ONES=M_MISC+1024
L_ZERO=M_MISC+2048
L_WPHI=M_MISC
L_STATS=M_MISC+3072
L_CS=M_MISC+4608
L_CNT=M_MISC+5120
L_WPHI2=M_MISC+5632
L_ST3=M_MISC+8192
LDS_SIZE=163840
C_P1,C_X1,C_O,C_P3,C_RED,C_ST,C_KVX = [L_CNT+4*i for i in (0,1,2,3,4,5,8)]
S_AX,S_WQKV,S_WPHI,S_WO,S_BX,S_W1,S_W2,S_W3,S_W4,S_GW,S_OUT,S_DBG,S_WS = 8,10,12,14,16,18,20,22,24,26,28,30,32
S_TAG=34; S_WAVE=35; S_X=36; S_J=37; S_RT=38; S_CT=39
SRD_A=40; SRD_B0=44; SRD_WS=48; SRD_T=52; SRD_B1=4
S_WR=56; S_WC=57; S_W=58; S_ROT=59; S_SWN=60; S_R64=61; S_C8=62; S_SWM=3
S_K=63
S_MASK=70
S_T0=72
def v(i): return f"v{i}"
def vr(i,n): return f"v[{i}:{i+n-1}]"
def s(i): return f"s{i}"
def sr(i,n): return f"s[{i}:{i+n-1}]"
def srd(i): return f"s[{i}:{i+3}]"
class Regs:
    def __init__(self,start,limit): self.next=start; self.limit=limit; self.hi=start
    def alloc(self,n=1,align=1):
        b=(self.next+align-1)//align*align; self.next=b+n
        assert self.next<=self.limit, "out of vgprs"
        self.hi=max(self.hi,self.next); return b
    def mark(self): return self.next
    def release(self,m): self.next=m
def set_srd(p, dst, ptr, nbytes, off=0):
    if off:
        p(f"s_add_u32 {s(dst)}, {s(ptr)}, {off:#x}")
        p(f"s_addc_u32 {s(dst+1)}, {s(ptr+1)}, 0")
    else:
        p(f"s_mov_b32 {s(dst)}, {s(ptr)}")
        p(f"s_mov_b32 {s(dst+1)}, {s(ptr+1)}")
    p(f"s_mov_b32 {s(dst+2)}, {nbytes:#x}")
    p(f"s_mov_b32 {s(dst+3)}, 0x20000")
GELU_C1 = -2*0.7978845608028654*1.4426950408889634
GELU_C2 = GELU_C1*0.044715
LOG2E = 1.4426950408889634
def f32(x): return "0x%08x"%struct.unpack("<I",struct.pack("<f",x))[0]
STAMP=bool(int(os.environ.get("STAMP","0")))
STAMPS=os.environ.get("STAMPS","").split(",")
def stamp(p,k):
    if not STAMP: return
    if k==0: p(f"s_memrealtime s[80:81]"); return
    if k==1: p(f"s_memtime s[82:83]"); return
    if k in STAMPS:
        i=STAMPS.index(k)+2
        assert i<10
        p(f"s_memtime s[{80+2*i}:{81+2*i}]")
def stamp_dump(p,vt=250):
    if not STAMP: return
    p("s_waitcnt lgkmcnt(0)")
    p(f"s_and_b32 s72, {s(S_WAVE)}, 3")
    p(f"s_cmp_lg_u32 s72, 0")
    p(f"s_cbranch_scc1 L_stampskip_{p.name}")
    p(f"s_lshr_b32 s72, {s(S_WAVE)}, 2")
    p(f"s_lshl_b32 s72, s72, 6")
    p(f"s_lshl_b32 s73, s2, 7")
    p(f"s_add_u32 s72, s72, s73")
    p(f"s_add_u32 s72, s72, {DBG_OFF:#x}")
    p(f"v_mov_b32 v{vt}, 0")
    p("s_mov_b64 exec, 1")
    for k in range(10):
        p(f"v_mov_b32 v{vt+1}, s{80+2*k}")
        p(f"buffer_store_dword v{vt+1}, v{vt}, {srd(SRD_WS)}, s72 offen offset:{4*k}")
        p("s_nop 1")
    p("s_mov_b64 exec, -1")
    p.label(f"L_stampskip_{p.name}")

class LgkQ:
    def __init__(self,p): self.p=p; self.q=[]
    def issue(self,text,tag): self.p(text); self.q.append(tag)
    def need(self,tags):
        idx=[i for i,t in enumerate(self.q) if t in tags]
        if not idx: return
        last=max(idx); n=len(self.q)-1-last
        assert n<=15
        self.p(f"s_waitcnt lgkmcnt({n})"); self.q=self.q[last+1:]
    def drain(self):
        if self.q: self.p("s_waitcnt lgkmcnt(0)"); self.q=[]
```

```python
from common import *

def bfrag_addr(p,R,dst,extra_const=0):
    m=R.mark(); t0=R.alloc(); t1=R.alloc(); t2=R.alloc()
    p(f"v_lshrrev_b32 {v(t0)}, 5, v0")
    p(f"v_lshlrev_b32 {v(t0)}, 3, {v(t0)}")
    p(f"v_bfe_u32 {v(t1)}, v0, 2, 2")
    p(f"v_add_u32 {v(t0)}, {v(t0)}, {v(t1)}")
    p(f"v_lshlrev_b32 {v(t0)}, 7, {v(t0)}")
    p(f"v_and_b32 {v(t1)}, 1, v0")
    p(f"v_lshlrev_b32 {v(t1)}, 3, {v(t1)}")
    p(f"v_add_u32 {v(t0)}, {v(t0)}, {v(t1)}")
    p(f"v_bfe_u32 {v(t1)}, v0, 4, 1")
    p(f"v_lshlrev_b32 {v(t1)}, 1, {v(t1)}")
    p(f"v_bfe_u32 {v(t2)}, v0, 1, 1")
    p(f"v_add_u32 {v(t1)}, {v(t1)}, {v(t2)}")
    p(f"s_lshl_b32 {s(S_T0)}, {s(S_WC)}, 2")
    p(f"v_add_u32 {v(t1)}, {s(S_T0)}, {v(t1)}")
    p(f"v_bfe_u32 {v(t2)}, v0, 3, 1")
    p(f"v_lshlrev_b32 {v(t2)}, 2, {v(t2)}")
    p(f"v_xor_b32 {v(t1)}, {v(t1)}, {v(t2)}")
    p(f"v_lshlrev_b32 {v(t1)}, 4, {v(t1)}")
    p(f"v_add_u32 {v(dst)}, {v(t0)}, {v(t1)}")
    if extra_const: p(f"v_add_u32 {v(dst)}, {extra_const:#x}, {v(dst)}")
    R.release(m)

class G128:
    def __init__(self,R):
        self.vA=R.alloc(8); self.vB=R.alloc(2)
        self.fx=[[R.alloc(4,4),R.alloc(4,4)],[R.alloc(4,4),R.alloc(4,4)]]
        self.fw=[[R.alloc(4,4),R.alloc(4,4)],[R.alloc(4,4),R.alloc(4,4)]]
        self.fb=self.fx[0][0]; assert self.fw[1][1]==self.fb+28
        self.acc=R.alloc(64,4)
        self.xacc=R.alloc(4,4); self.sel=R.alloc(4,4)
        self.xs=R.alloc(4,4); self.fe=[R.alloc(4,4),R.alloc(4,4)]; self.vE=R.alloc(1); self.vEc=R.alloc(1)
    def A(self,mb,nb): return self.acc+16*(2*mb+nb)
    def setup(self,p,R,cs=False,xs=False):
        m=R.mark(); t0=R.alloc(); t1=R.alloc(); t2=R.alloc()
        p(f"v_lshrrev_b32 {v(t0)}, 5, v0")
        p(f"v_bfe_u32 {v(t1)}, v0, 1, 3")
        p(f"v_xor_b32 {v(t0)}, {v(t0)}, {v(t1)}")
        p(f"v_lshlrev_b32 {v(t0)}, 4, {v(t0)}")
        p(f"v_and_b32 {v(t1)}, 31, v0")
        p(f"v_lshlrev_b32 {v(t1)}, 7, {v(t1)}")
        p(f"s_lshl_b32 {s(S_T0)}, {s(S_WR)}, 13")
        p(f"v_add_u32 {v(t1)}, {s(S_T0)}, {v(t1)}")
        p(f"s_lshl_b32 {s(S_T0)}, {s(S_SWM)}, 12")
        p(f"s_xor_b32 {s(S_T0+1)}, {s(S_T0)}, 4096")
        for ks in range(4):
            p(f"v_xor_b32 {v(t2)}, {ks<<5}, {v(t0)}")
            p(f"v_add_u32 {v(t2)}, {v(t1)}, {v(t2)}")
            p(f"v_add_u32 {v(self.vA+ks)}, {s(S_T0)}, {v(t2)}")
            p(f"v_add_u32 {v(self.vA+4+ks)}, {s(S_T0+1)}, {v(t2)}")
        if xs:
            p(f"v_and_b32 {v(t0)}, 15, v0")
            p(f"v_lshrrev_b32 {v(t1)}, 4, v0")
            p(f"v_xor_b32 {v(t2)}, {v(t0)}, {v(t1)}"); p(f"v_and_b32 {v(t2)}, 1, {v(t2)}")
            p(f"v_lshrrev_b32 {v(t1)}, 5, v0"); p(f"v_lshlrev_b32 {v(t1)}, 4, {v(t1)}"); p(f"v_add_u32 {v(t1)}, {L_GATE}, {v(t1)}")
            p(f"v_mov_b32 {v(self.vE)}, {L_ONES}")
            p(f"v_cmp_lt_u32 vcc, 1, {v(t0)}"); p(f"v_cndmask_b32 {v(self.vE)}, {v(self.vE)}, {v(t1)}, vcc")
            p(f"v_mov_b32 {v(t1)}, {L_ZERO}")
            p(f"v_cmp_lt_u32 vcc, 3, {v(t0)}"); p(f"v_cndmask_b32 {v(self.vE)}, {v(self.vE)}, {v(t1)}, vcc")
            p(f"v_cmp_eq_u32 vcc, 1, {v(t2)}"); p(f"v_cndmask_b32 {v(self.vE)}, {v(self.vE)}, {v(t1)}, vcc")
        bfrag_addr(p,R,t0,0x10000)
        p(f"s_lshl_b32 {s(S_T0)}, {s(S_SWN)}, 13")
        p(f"s_xor_b32 {s(S_T0+1)}, {s(S_T0)}, 8192")
        p(f"v_add_u32 {v(self.vB)}, {s(S_T0)}, {v(t0)}")
        p(f"v_add_u32 {v(self.vB+1)}, {s(S_T0+1)}, {v(t0)}")
        if cs:
            p(f"v_and_b32 {v(t0)}, 15, v0")
            p(f"v_bfe_u32 {v(t1)}, v0, 4, 1")
            p(f"v_cmp_eq_u32 vcc, {v(t0)}, {v(t1)}")
            p(f"v_mov_b32 {v(t2)}, 0x3f803f80")
            p(f"v_cndmask_b32 {v(self.sel)}, 0, {v(t2)}, vcc")
            for k in range(1,4): p(f"v_mov_b32 {v(self.sel+k)}, {v(self.sel)}")
        R.release(m)
    def reads(self,n,slotsA,slotsB,xs=False):
        i,ks=divmod(n,4); st=n%2
        a=slotsA[i]; b=slotsB[i]-65536
        assert 0<=a and a+4096+4096<=65536 and 0<=b and b+3*2048+512+512<=65536
        L=[]
        def tr(dst,nb,j): return (f"ds_read_b64_tr_b16 {vr(dst,2)}, {v(self.vB+nb)} offset:{b+ks*2048+j*512}")
        L.append((tr(self.fw[st][0],0,0),('w0',n)))
        L.append((tr(self.fw[st][0]+2,0,1),('w0',n)))
        L.append((f"ds_read_b128 {vr(self.fx[st][0],4)}, {v(self.vA+ks)} offset:{a}",('x0',n)))
        L.append((tr(self.fw[st][1],1,0),('w1',n)))
        L.append((tr(self.fw[st][1]+2,1,1),('w1',n)))
        L.append((f"ds_read_b128 {vr(self.fx[st][1],4)}, {v(self.vA+4+ks)} offset:{a}",('x1',n)))
        if xs: L.append((f"ds_read_b128 {vr(self.fe[st],4)}, {v(self.vEc)} offset:{ks*32}",('e',n)))
        return L
    def main(self,p,slotsA,slotsB,orient,cs=None,nst=8,ph='m1',xs=False,stage_hook=None):
        q=LgkQ(p); N=nst*4
        def hook(i):
            if stage_hook: stage_hook(i)
            if xs:
                p(f"s_add_u32 {s(S_T0)}, {s(S_ROT)}, {i}"); p(f"s_and_b32 {s(S_T0)}, {s(S_T0)}, 7"); p(f"s_lshl_b32 {s(S_T0)}, {s(S_T0)}, 7")
                p(f"v_add_u32 {v(self.vEc)}, {s(S_T0)}, {v(self.vE)}")
        p("s_barrier")
        stamp(p,ph+"_first")
        hook(0)
        for t,tag in self.reads(0,slotsA,slotsB,xs): q.issue(t,tag)
        for n in range(N):
            i,ks=divmod(n,4); st=n%2
            nxt=self.reads(n+1,slotsA,slotsB,xs) if n+1<N else []
            if ks==3 and n+1<N:
                q.drain(); stamp(p,f"{ph}_a{i+1}"); p("s_barrier"); stamp(p,f"{ph}_b{i+1}"); hook(i+1)
            def mf(mb,nb):
                D=self.A(mb,nb); x=self.fx[st][mb]; w=self.fw[st][nb]
                q.need({('x%d'%mb,n),('w%d'%nb,n)})
                c = "0" if n==0 else vr(D,16)
                if orient[nb]=='T': p(f"v_mfma_f32_32x32x16_bf16 {vr(D,16)}, {vr(w,4)}, {vr(x,4)}, {c}")
                else: p(f"v_mfma_f32_32x32x16_bf16 {vr(D,16)}, {vr(x,4)}, {vr(w,4)}, {c}")
            def rd(k):
                for _ in range(k):
                    if nxt: t,tag=nxt.pop(0); q.issue(t,tag)
            mf(0,0); rd(2); mf(0,1); rd(2)
            if cs is not None:
                c = "0" if n==0 else vr(self.xacc,4)
                p(f"v_mfma_f32_16x16x32_bf16 {vr(self.xacc,4)}, {vr(self.fw[st][cs],4)}, {vr(self.sel,4)}, {c}")
            mf(1,0); rd(2); mf(1,1)
            if xs:
                q.need({('e',n)})
                c = "0" if n==0 else vr(self.xs,4)
                p(f"v_mfma_f32_16x16x32_bf16 {vr(self.xs,4)}, {vr(self.fe[st],4)}, {vr(self.fx[st][0],4)}, {c}")
            rd(2)
        q.drain()
        stamp(p,ph+"_end")

class G64:
    D=int(os.environ.get("GD","5"))
    def __init__(self,R):
        self.NS=self.D+1
        self.vA=R.alloc(8); self.vB=R.alloc(1)
        self.fx=[R.alloc(4,4) for _ in range(self.NS)]
        self.fw=[R.alloc(4,4) for _ in range(self.NS)]
        self.acc=R.alloc(16,4)
    def setup(self,p,R):
        m=R.mark(); t0=R.alloc(); t1=R.alloc(); t2=R.alloc()
        p(f"v_lshrrev_b32 {v(t0)}, 5, v0")
        p(f"v_and_b32 {v(t1)}, 15, v0")
        p(f"v_xor_b32 {v(t0)}, {v(t0)}, {v(t1)}")
        p(f"v_lshlrev_b32 {v(t0)}, 4, {v(t0)}")
        p(f"v_and_b32 {v(t1)}, 31, v0")
        p(f"v_lshlrev_b32 {v(t1)}, 8, {v(t1)}")
        p(f"s_lshl_b32 {s(S_T0)}, {s(S_WR)}, 13")
        p(f"v_add_u32 {v(t1)}, {s(S_T0)}, {v(t1)}")
        for ks in range(8):
            p(f"v_xor_b32 {v(t2)}, {ks<<5}, {v(t0)}")
            p(f"v_add_u32 {v(self.vA+ks)}, {v(t1)}, {v(t2)}")
        bfrag_addr(p,R,self.vB,0x10000)
        R.release(m)
    def reads(self,n,steps,slotsA,slotsB):
        sl,ks=steps[n]; st=n%self.NS
        oa=slotsA[sl]; ob=slotsB[sl]-65536
        assert 0<=oa<65536 and 0<=ob and ob+16384<=65536
        return [(f"ds_read_b64_tr_b16 {vr(self.fw[st],2)}, {v(self.vB)} offset:{ob+ks*2048}",n),
                (f"ds_read_b64_tr_b16 {vr(self.fw[st]+2,2)}, {v(self.vB)} offset:{ob+ks*2048+512}",n),
                (f"ds_read_b128 {vr(self.fx[st],4)}, {v(self.vA+ks)} offset:{oa}",n)]
    def main(self,p,ksteps,slotsA,slotsB,slab_hook=None,ph='m2'):
        steps=[(sl,ks) for sl,k in enumerate(ksteps) for ks in range(k)]
        N=len(steps); D=self.D
        q=LgkQ(p)
        p("s_barrier")
        nxt=0
        def issue_upto(lim):
            nonlocal nxt
            while nxt<min(lim,N):
                if steps[nxt][1]==0 and steps[nxt][0]>0:
                    q.drain(); stamp(p,f"{ph}_a{steps[nxt][0]}"); p("s_barrier"); stamp(p,f"{ph}_b{steps[nxt][0]}")
                    if slab_hook: slab_hook(steps[nxt][0])
                for t,tag in self.reads(nxt,steps,slotsA,slotsB): q.issue(t,tag)
                nxt+=1
        issue_upto(D)
        for n in range(N):
            st=n%self.NS
            q.need({n})
            c="0" if n==0 else vr(self.acc,16)
            p(f"v_mfma_f32_32x32x16_bf16 {vr(self.acc,16)}, {vr(self.fw[st],4)}, {vr(self.fx[st],4)}, {c}")
            issue_upto(n+1+D)
        q.drain()

class XP:
    def __init__(self,R,quad=False):
        self.vW=R.alloc(4); self.vRd=R.alloc(1); self.vRq=R.alloc(2) if quad else None
    def setup(self,p,R):
        m=R.mark(); t0=R.alloc(); t1=R.alloc()
        p(f"s_lshl_b32 {s(S_T0)}, {s(S_WAVE)}, 12")
        p(f"s_add_u32 {s(S_T0)}, {s(S_T0)}, {M_SCR}")
        p(f"v_and_b32 {v(t0)}, 31, v0")
        p(f"v_lshlrev_b32 {v(t0)}, 6, {v(t0)}")
        p(f"v_lshrrev_b32 {v(t1)}, 5, v0")
        p(f"v_lshlrev_b32 {v(t1)}, 3, {v(t1)}")
        p(f"v_add_u32 {v(t0)}, {v(t0)}, {v(t1)}")
        p(f"v_add_u32 {v(t0)}, {s(S_T0)}, {v(t0)}")
        p(f"v_bfe_u32 {v(t1)}, v0, 1, 2")
        p(f"v_lshlrev_b32 {v(t1)}, 4, {v(t1)}")
        p(f"v_add_u32 {v(t0)}, {v(t0)}, {v(t1)}")
        for j in range(4): p(f"v_xor_b32 {v(self.vW+j)}, {j<<4}, {v(t0)}")
        p(f"v_lshrrev_b32 {v(t0)}, 2, v0")
        p(f"v_lshlrev_b32 {v(t0)}, 6, {v(t0)}")
        p(f"v_bfe_u32 {v(t1)}, v0, 3, 2")
        p(f"v_and_b32 {v(self.vRd)}, 3, v0")
        p(f"v_xor_b32 {v(t1)}, {v(t1)}, {v(self.vRd)}")
        p(f"v_lshlrev_b32 {v(t1)}, 4, {v(t1)}")
        p(f"v_add_u32 {v(t0)}, {v(t0)}, {v(t1)}")
        p(f"v_add_u32 {v(self.vRd)}, {s(S_T0)}, {v(t0)}")
        if self.vRq is not None:
            p(f"v_lshrrev_b32 {v(t0)}, 1, v0")
            p(f"v_lshlrev_b32 {v(t0)}, 6, {v(t0)}")
            p(f"v_bfe_u32 {v(t1)}, v0, 2, 2")
            p(f"v_and_b32 {v(self.vRq)}, 1, v0")
            p(f"v_xor_b32 {v(t1)}, {v(t1)}, {v(self.vRq)}")
            p(f"v_lshlrev_b32 {v(t1)}, 4, {v(t1)}")
            p(f"v_add_u32 {v(t0)}, {v(t0)}, {v(t1)}")
            p(f"v_add_u32 {v(self.vRq)}, {s(S_T0)}, {v(t0)}")
            p(f"v_xor_b32 {v(self.vRq+1)}, 32, {v(self.vRq)}")
        R.release(m)
    def writes(self,q,pk,area):
        for j in range(4): q.issue(f"ds_write_b64 {v(self.vW+j)}, {vr(pk+2*j,2)} offset:{area*2048}",('w',area))
    def reads(self,q,dst,area,tag,mode='row'):
        for t in range(2):
            if mode=='row': q.issue(f"ds_read_b128 {vr(dst+4*t,4)}, {v(self.vRd)} offset:{area*2048+t*1024}",tag)
            else: q.issue(f"ds_read_b128 {vr(dst+4*t,4)}, {v(self.vRq+t)} offset:{area*2048}",tag)

def pack16(p,dst,src):
    for k in range(8): p(f"v_cvt_pk_bf16_f32 {v(dst+k)}, {v(src+2*k)}, {v(src+2*k+1)}")
def unpack8(p,dst,src):
    for k in range(4):
        p(f"v_lshlrev_b32 {v(dst+2*k)}, 16, {v(src+k)}")
        p(f"v_and_b32 {v(dst+2*k+1)}, 0xffff0000, {v(src+k)}")

def gelu_consts(p,KC):
    p(f"v_mov_b32 {v(KC)}, {f32(GELU_C2)}")
    p(f"v_mov_b32 {v(KC+1)}, {f32(GELU_C1)}")
    p(f"v_mov_b32 {v(KC+2)}, 1.0")
    p(f"v_mov_b32 {v(KC+3)}, 1.0")
def ln_gelu_block(p,A,cs,S,T,KC,pk):
    P=range(0,16,2)
    for k in P: p(f"v_pk_mul_f32 {vr(T+k,2)}, {vr(cs+k,2)}, {vr(S,2)} op_sel:[0,1] op_sel_hi:[1,1]")
    for k in P: p(f"v_pk_fma_f32 {vr(A+k,2)}, {vr(A+k,2)}, {vr(S,2)}, {vr(T+k,2)} op_sel:[0,0,0] op_sel_hi:[1,0,1]")
    for k in P: p(f"v_pk_mul_f32 {vr(T+k,2)}, {vr(A+k,2)}, {vr(A+k,2)}")
    for k in P: p(f"v_pk_fma_f32 {vr(T+k,2)}, {vr(T+k,2)}, {vr(KC,2)}, {vr(KC,2)} op_sel:[0,0,1] op_sel_hi:[1,0,1]")
    for k in P: p(f"v_pk_mul_f32 {vr(T+k,2)}, {vr(T+k,2)}, {vr(A+k,2)}")
    for k in range(16): p(f"v_exp_f32 {v(T+k)}, {v(T+k)}")
    for k in P: p(f"v_pk_add_f32 {vr(T+k,2)}, {vr(T+k,2)}, {vr(KC+2,2)}")
    for k in range(16): p(f"v_rcp_f32 {v(T+k)}, {v(T+k)}")
    for k in P: p(f"v_pk_mul_f32 {vr(A+k,2)}, {vr(A+k,2)}, {vr(T+k,2)}")
    pack16(p,pk,A)

def softmax_pm(p,X,P,Nn,T,KL):
    E=T; F=T+8; a=T+16; b=T+17; c=T+18; d=T+19
    p(f"v_max3_f32 {v(a)}, {v(X)}, {v(X+1)}, {v(X+2)}")
    p(f"v_max3_f32 {v(b)}, -{v(X)}, -{v(X+1)}, -{v(X+2)}")
    p(f"v_max3_f32 {v(a)}, {v(a)}, {v(X+3)}, {v(X+4)}")
    p(f"v_max3_f32 {v(b)}, {v(b)}, -{v(X+3)}, -{v(X+4)}")
    p(f"v_max3_f32 {v(a)}, {v(a)}, {v(X+5)}, {v(X+6)}")
    p(f"v_max3_f32 {v(b)}, {v(b)}, -{v(X+5)}, -{v(X+6)}")
    p(f"v_max_f32 {v(a)}, {v(a)}, {v(X+7)}")
    p(f"v_max_f32 {v(b)}, {v(b)}, -{v(X+7)}")
    p(f"v_permlane32_swap_b32 {v(a)}, {v(b)}")
    p(f"v_max_f32 {v(a)}, {v(a)}, {v(b)}")
    p(f"v_mov_b32 {v(b)}, {v(a)}")
    p(f"v_permlane32_swap_b32 {v(a)}, {v(b)}")
    p(f"v_pk_mul_f32 {vr(a,2)}, {vr(a,2)}, {vr(KL,2)} op_sel:[0,1] op_sel_hi:[1,1]")
    for k in range(0,8,2):
        p(f"v_pk_fma_f32 {vr(E+k,2)}, {vr(X+k,2)}, {vr(KL,2)}, {vr(a,2)} op_sel:[0,0,0] op_sel_hi:[1,0,0]")
    for k in range(0,8,2):
        p(f"v_pk_fma_f32 {vr(F+k,2)}, {vr(X+k,2)}, {vr(KL,2)}, {vr(a,2)} op_sel:[0,1,1] op_sel_hi:[1,1,1]")
    for k in range(8): p(f"v_exp_f32 {v(E+k)}, {v(E+k)}")
    for k in range(8): p(f"v_exp_f32 {v(F+k)}, {v(F+k)}")
    assert P%2==0 and Nn%2==0
    p(f"v_pk_add_f32 {vr(P,2)}, {vr(E,2)}, {vr(E+2,2)}")
    p(f"v_pk_add_f32 {vr(P+2,2)}, {vr(E+4,2)}, {vr(E+6,2)}")
    p(f"v_pk_add_f32 {vr(Nn,2)}, {vr(F,2)}, {vr(F+2,2)}")
    p(f"v_pk_add_f32 {vr(Nn+2,2)}, {vr(F+4,2)}, {vr(F+6,2)}")
    p(f"v_pk_add_f32 {vr(P,2)}, {vr(P,2)}, {vr(P+2,2)}")
    p(f"v_pk_add_f32 {vr(Nn,2)}, {vr(Nn,2)}, {vr(Nn+2,2)}")
    p(f"v_add_f32 {v(c)}, {v(P)}, {v(P+1)}")
    p(f"v_add_f32 {v(d)}, {v(Nn)}, {v(Nn+1)}")
    p(f"v_permlane32_swap_b32 {v(c)}, {v(d)}")
    p(f"v_add_f32 {v(c)}, {v(c)}, {v(d)}")
    p(f"v_mov_b32 {v(d)}, {v(c)}")
    p(f"v_permlane32_swap_b32 {v(c)}, {v(d)}")
    p(f"v_rcp_f32 {v(c)}, {v(c)}")
    p(f"v_rcp_f32 {v(d)}, {v(d)}")
    for k in range(0,8,2):
        p(f"v_pk_mul_f32 {vr(E+k,2)}, {vr(E+k,2)}, {vr(c,2)} op_sel:[0,0] op_sel_hi:[1,0]")
    for k in range(0,8,2):
        p(f"v_pk_mul_f32 {vr(F+k,2)}, {vr(F+k,2)}, {vr(c,2)} op_sel:[0,1] op_sel_hi:[1,1]")
    for k in range(4): p(f"v_cvt_pk_bf16_f32 {v(P+k)}, {v(E+2*k)}, {v(E+2*k+1)}")
    for k in range(4): p(f"v_cvt_pk_bf16_f32 {v(Nn+k)}, {v(F+2*k)}, {v(F+2*k+1)}")

class Uid:
    n=0
def uid():
    Uid.n+=1; return Uid.n
def lds_signal(p,R,addr_expr_sgpr=None,const=None):
    m=R.mark(); a=R.alloc(); d=R.alloc()
    p(f"v_mov_b32 {v(a)}, {const if const is not None else s(addr_expr_sgpr)}")
    p(f"v_mov_b32 {v(d)}, 1")
    p("s_mov_b64 exec, 1")
    p(f"ds_write_b32 {v(a)}, {v(d)}")
    p("s_mov_b64 exec, -1")
    R.release(m)
def lds_add(p,R,const):
    m=R.mark(); a=R.alloc(); d=R.alloc()
    p(f"v_mov_b32 {v(a)}, {const}")
    p(f"v_mov_b32 {v(d)}, 1")
    p("s_mov_b64 exec, 1")
    p(f"ds_add_u32 {v(a)}, {v(d)}")
    p("s_mov_b64 exec, -1")
    R.release(m)
def lds_spin(p,R,value,addr_sgpr=None,const=None):
    m=R.mark(); a=R.alloc(); d=R.alloc(); u=uid()
    p(f"v_mov_b32 {v(a)}, {const if const is not None else s(addr_sgpr)}")
    p(f"s_mov_b32 {s(S_T0+6)}, 0x100000")
    p.label(f"L_spin{u}")
    p(f"ds_read_b32 {v(d)}, {v(a)}")
    p("s_waitcnt lgkmcnt(0)")
    p(f"v_readfirstlane_b32 {s(S_T0+7)}, {v(d)}")
    p(f"s_cmp_eq_u32 {s(S_T0+7)}, {value}")
    p(f"s_cbranch_scc1 L_spin{u}_ok")
    p(f"s_sub_u32 {s(S_T0+6)}, {s(S_T0+6)}, 1")
    p(f"s_cmp_lg_u32 {s(S_T0+6)}, 0")
    p(f"s_cbranch_scc1 L_spin{u}")
    p.label(f"L_spin{u}_ok")
    R.release(m)

def arrive_push(p,R,cnt_addr,count,PA,name,started=False,nowait=False):
    m=R.mark(); a=R.alloc(); d=R.alloc()
    if not nowait: p("s_waitcnt vmcnt(0)")
    p(f"v_mov_b32 {v(a)}, {cnt_addr}")
    p(f"v_mov_b32 {v(d)}, 1")
    p("s_mov_b64 exec, 1")
    p(f"ds_add_rtn_u32 {v(d)}, {v(a)}, {v(d)}")
    p("s_waitcnt lgkmcnt(0)")
    p(f"v_readfirstlane_b32 {s(S_T0)}, {v(d)}")
    p("s_mov_b64 exec, -1")
    p(f"s_cmp_lg_u32 {s(S_T0)}, {count-1}")
    p(f"s_cbranch_scc1 L_nopush_{name}")
    p(f"v_mov_b32 {v(d)}, {s(S_TAG)}")
    p(f"s_mov_b64 exec, {sr(S_MASK,2)}")
    p(f"buffer_store_dword {v(d)}, {v(PA)}, {srd(SRD_WS)}, 0 offen sc1")
    if started:
        p(f"s_lshl_b32 {s(S_T0)}, s2, 2"); p(f"s_add_u32 {s(S_T0)}, {s(S_T0)}, {STARTED:#x}")
        p("s_mov_b64 exec, 1")
        p(f"v_mov_b32 {v(a)}, 0")
        p(f"v_mov_b32 {v(d)}, {s(S_TAG)}")
        p(f"buffer_store_dword {v(d)}, {v(a)}, {srd(SRD_WS)}, {s(S_T0)} offen sc1")
    p("s_mov_b64 exec, -1")
    p.label(f"L_nopush_{name}")
    R.release(m)

def poll_own(p,R,name,phase,mask_sgpr,only_wave=None):
    m=R.mark(); a=R.alloc(1); d=R.alloc(1)
    if only_wave is not None:
        p(f"s_cmp_lg_u32 {s(S_WAVE)}, {only_wave}")
        p(f"s_cbranch_scc1 L_poll_{name}_done")
    p(f"v_and_b32 {v(a)}, 31, v0")
    p(f"v_lshlrev_b32 {v(a)}, 2, {v(a)}")
    p(f"s_lshl_b32 {s(S_T0)}, s2, 7")
    p(f"s_add_u32 {s(S_T0)}, {s(S_T0)}, {FL(phase):#x}")
    p(f"s_mov_b32 {s(S_T0+1)}, 0x40000")
    p.label(f"L_poll_{name}")
    p(f"buffer_load_dword {v(d)}, {v(a)}, {srd(SRD_WS)}, {s(S_T0)} offen sc1")
    p("s_waitcnt vmcnt(0)")
    p(f"v_cmp_ne_u32 vcc, {s(S_TAG)}, {v(d)}")
    p(f"s_and_b32 {s(S_T0+2)}, vcc_lo, {s(mask_sgpr)}")
    p(f"s_cbranch_scc0 L_poll_{name}_done")
    p(f"s_sub_u32 {s(S_T0+1)}, {s(S_T0+1)}, 1")
    p(f"s_cmp_lg_u32 {s(S_T0+1)}, 0")
    p(f"s_cbranch_scc1 L_poll_{name}")
    p.label(f"L_poll_{name}_done")
    R.release(m)

def tile24_wg(p,dst,r64,c,t):
    p(f"v_lshlrev_b32 {v(dst)}, 2, {v(c)}")
    p(f"v_and_b32 {v(t)}, 3, {v(r64)}")
    p(f"v_or_b32 {v(dst)}, {v(dst)}, {v(t)}")
    p(f"v_lshlrev_b32 {v(dst)}, 3, {v(dst)}")
    p(f"v_lshrrev_b32 {v(t)}, 2, {v(r64)}")
    p(f"v_add_u32 {v(dst)}, {v(dst)}, {v(t)}")
def tile3_wg(p,dst,rt,ct,t):
    p(f"v_and_b32 {v(dst)}, 3, {v(ct)}")
    p(f"v_lshlrev_b32 {v(dst)}, 3, {v(dst)}")
    p(f"v_and_b32 {v(t)}, 7, {v(rt)}")
    p(f"v_add_u32 {v(dst)}, {v(dst)}, {v(t)}")
    p(f"v_lshlrev_b32 {v(dst)}, 3, {v(dst)}")
    p(f"v_lshrrev_b32 {v(t)}, 2, {v(ct)}")
    p(f"v_lshlrev_b32 {v(t)}, 1, {v(t)}")
    p(f"v_add_u32 {v(dst)}, {v(dst)}, {v(t)}")
    p(f"v_lshrrev_b32 {v(t)}, 3, {v(rt)}")
    p(f"v_add_u32 {v(dst)}, {v(dst)}, {v(t)}")
def flag_addr(p,dst,wg,slot,region_vgpr_or_const):
    p(f"v_lshlrev_b32 {v(dst)}, 7, {v(wg)}")
    p(f"v_lshlrev_b32 {v(slot)}, 2, {v(slot)}")
    p(f"v_add_u32 {v(dst)}, {v(dst)}, {v(slot)}")
    if isinstance(region_vgpr_or_const,int): p(f"v_add_u32 {v(dst)}, {region_vgpr_or_const:#x}, {v(dst)}")
    else: p(f"v_add_u32 {v(dst)}, {v(dst)}, {region_vgpr_or_const}")
```

```python
import re

class AsmError(Exception): pass

_reg_re = re.compile(r'^(-|\|)?(abs\()?([vsa])(?:(\d+)|\[(\d+):(\d+)\])\)?\|?$')
def parse_reg(tok):
    t = tok.strip()
    if t.startswith('-'): t = t[1:]
    if t.startswith('abs(') and t.endswith(')'): t = t[4:-1]
    if t.startswith('|') and t.endswith('|'): t = t[1:-1]
    if t.startswith('neg(') and t.endswith(')'): t = t[4:-1]
    if t == 'vcc': return ('s', 106, 107)
    if t == 'vcc_lo': return ('s', 106, 106)
    if t == 'vcc_hi': return ('s', 107, 107)
    if t == 'exec': return ('s', 126, 127)
    if t == 'exec_lo': return ('s', 126, 126)
    if t == 'exec_hi': return ('s', 127, 127)
    if t == 'm0': return ('s', 124, 124)
    m = re.match(r'^([vsa])(\d+)$', t)
    if m: return (m.group(1), int(m.group(2)), int(m.group(2)))
    m = re.match(r'^([vsa])\[(\d+):(\d+)\]$', t)
    if m: return (m.group(1), int(m.group(2)), int(m.group(3)))
    return None

def regs(r):
    if r is None: return set()
    k, lo, hi = r
    return {(k, i) for i in range(lo, hi+1)}

TRANS = ('v_exp_f32','v_log_f32','v_rcp_f32','v_rsq_f32','v_sqrt_f32','v_sin_f32','v_cos_f32','v_rcp_iflag_f32')

class Ins:
    __slots__=('text','op','ops','mods','cls','rd','wr','passes','srcC','dstD','note','isdpp','storedata','wide')
    def __init__(self, text):
        self.text = text
        s = text.split(';')[0].strip()
        self.note = None
        parts = s.split(None, 1)
        self.op = parts[0]
        rest = parts[1] if len(parts) > 1 else ''
        ops=[]; depth=0; cur=''
        for ch in rest:
            if ch in '[(': depth+=1
            if ch in '])': depth-=1
            if ch==',' and depth==0: ops.append(cur.strip()); cur=''
            else: cur+=ch
        if cur.strip(): ops.append(cur.strip())
        mods=''
        if ops:
            last=ops[-1]
            depth=0; idx=-1
            for i,ch in enumerate(last):
                if ch in '[(': depth+=1
                if ch in '])': depth-=1
                if ch==' ' and depth==0: idx=i; break
            if idx>=0:
                mods=last[idx+1:]; ops[-1]=last[:idx]
        self.ops=ops; self.mods=mods
        self.classify()
    def classify(self):
        op=self.op; ops=self.ops; mods=self.mods
        R=[parse_reg(o) for o in ops]
        self.rd=set(); self.wr=set(); self.passes=0; self.srcC=set(); self.dstD=set(); self.isdpp=False; self.storedata=set(); self.wide=False
        b=op
        for suf in ('_e32','_e64','_dpp','_sdwa'):
            if b.endswith(suf): b=b[:-len(suf)]
        if op.endswith('_dpp') or 'row_' in mods or 'quad_perm' in mods: self.isdpp=True
        if op.startswith('v_mfma'):
            self.cls='mfma'
            self.passes = 8 if '32x32' in op else 4
            self.wr=regs(R[0]); self.dstD=set(self.wr)
            self.rd=regs(R[1])|regs(R[2])|regs(R[3]); self.srcC=regs(R[3])
        elif op.startswith('v_'):
            self.cls='trans' if b in TRANS else 'valu'
            if b.startswith('v_cmp'):
                self.wr=regs(R[0]); self.rd=set().union(*[regs(r) for r in R[1:]])
            elif b in ('v_readfirstlane_b32','v_readlane_b32'):
                self.wr=regs(R[0]); self.rd=set().union(*[regs(r) for r in R[1:]])
            elif b.startswith('v_permlane') and 'swap' in b:
                self.wr=regs(R[0])|regs(R[1]); self.rd=set(self.wr)
            elif b in ('v_add_co_u32','v_sub_co_u32','v_addc_co_u32','v_subb_co_u32'):
                self.wr=regs(R[0])|regs(R[1]); self.rd=set().union(*[regs(r) for r in R[2:]])
            else:
                self.wr=regs(R[0]); self.rd=set().union(*[regs(r) for r in R[1:]]) if len(R)>1 else set()
                if b in ('v_fmac_f32','v_dot2c_f32_bf16','v_pk_fmac_f16','v_writelane_b32','v_mac_f32'): self.rd|=self.wr
                if b=='v_cndmask_b32' and len(ops)==3: self.rd|=regs(('s',106,107))
                if self.isdpp or op.endswith('_sdwa'):
                    if 'bound_ctrl' not in mods: self.rd|=self.wr
            self.rd|=regs(('s',126,127))
        elif op.startswith('ds_'):
            if op.startswith('ds_read') or op.startswith('ds_bpermute') or op.startswith('ds_permute') or op.startswith('ds_swizzle'):
                self.cls='ds_read'; self.wr=regs(R[0]); self.rd=set().union(*[regs(r) for r in R[1:]])
            else:
                self.cls='ds_write'; self.rd=set().union(*[regs(r) for r in R])
        elif op.startswith('buffer_load') or op.startswith('global_load'):
            if ' lds' in ' '+mods or op.startswith('global_load_lds'):
                self.cls='dma'; self.rd=set().union(*[regs(r) for r in R])|regs(('s',124,124))
            else:
                self.cls='vload'; self.wr=regs(R[0]); self.rd=set().union(*[regs(r) for r in R[1:]])
        elif op.startswith('buffer_store') or op.startswith('global_store') or op.startswith('buffer_atomic') or op.startswith('global_atomic'):
            self.cls='vstore'; self.rd=set().union(*[regs(r) for r in R])
            if op.startswith('buffer'): self.storedata=regs(R[0])
            else: self.storedata=regs(R[1])
            self.wide = 'x4' in op or 'x3' in op
        elif op in ('buffer_inv','buffer_wbl2'):
            self.cls='vstore'
        elif op=='s_waitcnt': self.cls='wait'
        elif op=='s_nop': self.cls='nop'
        elif op=='s_barrier': self.cls='barrier'
        elif op.startswith('s_cbranch') or op=='s_branch':
            self.cls='branch'
            if 'vcc' in op: self.rd=regs(('s',106,107))
            if 'exec' in op: self.rd=regs(('s',126,127))
        elif op=='s_endpgm': self.cls='end'
        elif op.startswith('s_load') or op.startswith('s_buffer_load') or op in('s_memtime','s_memrealtime'):
            self.cls='smem'; self.wr=regs(R[0]); self.rd=set().union(*[regs(r) for r in R[1:]]) if len(R)>1 else set()
        elif op.startswith('s_'):
            self.cls='salu'
            if op.startswith('s_cmp') or op in('s_setprio','s_sleep','s_bitcmp0_b32','s_bitcmp1_b32'):
                self.rd=set().union(*[regs(r) for r in R]) if R else set()
            else:
                self.wr=regs(R[0]) if R else set(); self.rd=set().union(*[regs(r) for r in R[1:]]) if len(R)>1 else set()
                if 'saveexec' in op: self.wr|=regs(('s',126,127)); self.rd|=regs(('s',126,127))
                if op in ('s_addk_i32','s_mulk_i32'): self.rd|=self.wr
        else:
            raise AsmError('unknown op: '+self.text)
    def nstates(self):
        if self.cls=='nop': return int(self.ops[0],0)+1
        return 1

class Prog:
    def __init__(self, name): self.name=name; self.items=[]
    def __call__(self, text):
        for ln in text.split('\n'):
            s=ln.strip()
            if not s: continue
            if s.startswith(';'): self.items.append(('c',s)); continue
            if s.endswith(':') and ' ' not in s: self.items.append(('l',s)); continue
            self.items.append(('i',Ins(s)))
    def comment(self,s): self.items.append(('c','; '+s))
    def label(self,s): self.items.append(('l',s+':'))

def fix_hazards(prog, check_counters=True, entry_clean=True):
    out=[]
    t=0
    lastw_valu={}
    lastw_trans={}
    lastw_mfma={}
    lastC_read={}
    last_store={}
    lastw_sgpr_valu={}
    lastw_m0=-100
    lastw_exec_salu=-100
    vm=[]
    lg=[]
    errors=[]
    def need(prod_t, ws):
        have = t - prod_t - 1
        return max(0, ws-have)
    def flush_need():
        p=0
        for r,x in lastw_valu.items(): p=max(p,need(x,2))
        for r,x in lastw_trans.items(): p=max(p,need(x,1))
        for r,(x,pp,_) in lastw_mfma.items(): p=max(p,need(x,12 if pp==8 else 8))
        for r,(x,pp) in lastC_read.items(): p=max(p,need(x,7 if pp==8 else 3))
        for r,x in last_store.items(): p=max(p,need(x,2))
        for r,x in lastw_sgpr_valu.items(): p=max(p,need(x,5))
        p=max(p,need(lastw_m0,1))
        return p
    for kind,it in prog.items:
        if kind=='c': out.append('  '+it); continue
        if kind=='l':
            p=flush_need()
            while p>0:
                n=min(p,16); out.append(f'  s_nop {n-1}'); t+=n; p-=n
            out.append(it)
            continue
        ins=it
        pad=0
        c=ins.cls
        vrd={r for r in ins.rd if r[0] in 'va'}; vwr={r for r in ins.wr if r[0] in 'va'}
        srd={r for r in ins.rd if r[0]=='s'}
        isvalu = c in ('valu','trans')
        if c=='mfma':
            for r in ins.rd:
                if r in lastw_valu: pad=max(pad,need(lastw_valu[r],2))
                if r in lastw_mfma:
                    pt,pp,dset=lastw_mfma[r]
                    if r in ins.srcC and not (r in (ins.rd-ins.srcC) and False):
                        isAB = False
                    R=[parse_reg(o) for o in ins.ops]
                    inAB = r in (regs(R[1])|regs(R[2]))
                    if inAB: pad=max(pad,need(pt,12 if pp==8 else 8))
                    if r in ins.srcC:
                        if ins.srcC==dset and pp==ins.passes: pass
                        else: pad=max(pad,need(pt,10 if pp==8 else 6))
            for r in ins.wr:
                if r in lastw_mfma and r not in ins.srcC:
                    pt,pp,dset=lastw_mfma[r]; pad=max(pad,need(pt,12 if pp==8 else 8))
                if r in lastw_valu: pad=max(pad,need(lastw_valu[r],2))
        if isvalu or c in ('ds_read','ds_write','vload','vstore','dma'):
            for r in (vrd|vwr):
                if r in lastw_mfma:
                    pt,pp,dset=lastw_mfma[r]; pad=max(pad,need(pt,12 if pp==8 else 8))
        if isvalu:
            for r in vwr:
                if r in lastC_read:
                    pt,pp=lastC_read[r]; pad=max(pad,need(pt,7 if pp==8 else 3))
                if r in last_store: pad=max(pad,need(last_store[r],2))
            for r in vrd:
                if r in lastw_trans and c!='trans': pad=max(pad,need(lastw_trans[r],1))
            b=ins.op
            if 'permlane' in b or ins.isdpp:
                for r in vrd:
                    if r in lastw_valu: pad=max(pad,need(lastw_valu[r],2))
            if b.startswith('v_readfirstlane') or b.startswith('v_readlane'):
                for r in vrd:
                    if r in lastw_valu: pad=max(pad,need(lastw_valu[r],1))
            for r in srd:
                if r in lastw_sgpr_valu: pad=max(pad,need(lastw_sgpr_valu[r],2 if not b.startswith('v_readlane') else 4))
        if c in ('ds_read','vload') :
            for r in vwr:
                if r in lastC_read:
                    pt,pp=lastC_read[r]; pad=max(pad,need(pt,7 if pp==8 else 3))
                if r in last_store: pad=max(pad,need(last_store[r],1))
        if c in ('ds_read','ds_write','vload','vstore','dma'):
            for r in vrd:
                if r in lastw_trans: pad=max(pad,need(lastw_trans[r],1))
        if c in ('vload','vstore','dma'):
            for r in srd:
                if r in lastw_sgpr_valu: pad=max(pad,need(lastw_sgpr_valu[r],5))
        if c=='dma': pad=max(pad,need(lastw_m0,1))
        if c in ('salu','branch','smem'):
            for r in srd:
                if r in lastw_sgpr_valu: pad=max(pad,need(lastw_sgpr_valu[r],4))
        if c=='branch': pad=max(pad,flush_need())
        if check_counters:
            touched=ins.rd|ins.wr
            if c!='wait':
                for q in vm:
                    if q & touched and not (c=='vload' and not (q & ins.rd)): errors.append(f'{prog.name}: vm pending reg used by: {ins.text}')
                for q,_ in lg:
                    if q & touched: errors.append(f'{prog.name}: lgkm pending reg used by: {ins.text}')
        if pad>0:
            while pad>0:
                n=min(pad,16); out.append(f'  s_nop {n-1}'); t+=n; pad-=n
        out.append('  '+ins.text)
        if c=='wait':
            txt=ins.text
            m=re.search(r'vmcnt\((\d+)\)',txt)
            if m:
                n=int(m.group(1))
                while len(vm)>n: vm.pop(0)
            m=re.search(r'lgkmcnt\((\d+)\)',txt)
            if m:
                n=int(m.group(1))
                if any(s for _,s in lg) and n!=0: errors.append(f'{prog.name}: lgkmcnt({n}) with smem outstanding')
                while len(lg)>n: lg.pop(0)
        if c in ('vload','vstore','dma'):
            vm.append(set(ins.wr) if c=='vload' else set())
            if len(vm)>63: errors.append(f'{prog.name}: >63 vm ops outstanding at {ins.text}')
        if c in ('ds_read','ds_write'):
            lg.append((set(ins.wr),False))
        if c=='smem' and ins.op not in ('s_memtime','s_memrealtime'):
            lg.append((set(ins.wr),True))
        if isvalu:
            for r in ins.wr:
                if r[0] in 'va':
                    lastw_valu[r]=t; lastw_mfma.pop(r,None)
                    if c=='trans': lastw_trans[r]=t
                    else: lastw_trans.pop(r,None)
                else: lastw_sgpr_valu[r]=t
        if c=='mfma':
            for r in ins.wr:
                lastw_mfma[r]=(t,ins.passes,ins.dstD); lastw_valu.pop(r,None); lastw_trans.pop(r,None)
            for r in ins.srcC: lastC_read[r]=(t,ins.passes)
        if c in('ds_read','vload'):
            for r in ins.wr:
                lastw_valu.pop(r,None); lastw_trans.pop(r,None); lastw_mfma.pop(r,None)
        if c=='vstore' and ins.wide:
            for r in ins.storedata: last_store[r]=t
        if c=='salu':
            for r in ins.wr:
                lastw_sgpr_valu.pop(r,None)
                if r==('s',124): lastw_m0=t
        t+=ins.nstates()
    return out, errors
```

```python
from cores import *
K_A=S_K+0; K_B=S_K+1; K_PB0=S_K+2; K_PB1=S_K+3; K_ASH=S_K+4; K_O=S_K+5

class VmQ:
    def __init__(self,p): self.p=p; self.q=[]
    def add(self,tag,n=1): self.q.extend([tag]*n)
    def need(self,tag):
        idx=[i for i,t in enumerate(self.q) if t==tag]
        if not idx: return
        last=max(idx); n=len(self.q)-1-last
        self.p(f"s_waitcnt vmcnt({n})"); self.q=self.q[last+1:]
    def drain(self): self.p("s_waitcnt vmcnt(0)"); self.q=[]

def a128_voffs(p,R,vA):
    m=R.mark(); t0=R.alloc(); t1=R.alloc(); t2=R.alloc(); t3=R.alloc()
    p(f"v_lshrrev_b32 {v(t0)}, 3, v0")
    p(f"v_and_b32 {v(t1)}, 7, v0")
    p(f"v_lshrrev_b32 {v(t2)}, 4, v0")
    p(f"s_lshl_b32 {s(S_T0)}, {s(S_RT)}, 2")
    p(f"s_add_u32 {s(S_T0)}, {s(S_T0)}, {s(S_W)}")
    p(f"s_lshl_b32 {s(S_T0)}, {s(S_T0)}, 15")
    p(f"v_lshlrev_b32 {v(t0)}, 10, {v(t0)}")
    p(f"v_add_u32 {v(t0)}, {s(S_T0)}, {v(t0)}")
    p(f"v_xor_b32 {v(t3)}, {v(t2)}, {v(t1)}")
    p(f"v_lshlrev_b32 {v(t3)}, 4, {v(t3)}")
    p(f"v_add_u32 {v(vA)}, {v(t0)}, {v(t3)}")
    p(f"v_xor_b32 {v(t3)}, 64, {v(t3)}")
    p(f"v_add_u32 {v(t3)}, {v(t0)}, {v(t3)}")
    p(f"v_add_u32 {v(vA+1)}, {7*1024}, {v(t3)}")
    p(f"v_add_u32 {v(vA+2)}, {14*1024}, {v(vA)}")
    p(f"v_add_u32 {v(vA+3)}, {21*1024}, {v(t3)}")
    R.release(m)

def b128_voffs(p,R,vB,pb0,pb1,col0,col1):
    m=R.mark(); t0=R.alloc(); t1=R.alloc(); t2=R.alloc()
    p(f"v_lshrrev_b32 {v(t0)}, 3, v0")
    p(f"s_lshl_b32 {s(S_T0+6)}, {s(S_W)}, 4")
    p(f"v_add_u32 {v(t0)}, {s(S_T0+6)}, {v(t0)}")
    p(f"v_bfe_u32 {v(t1)}, v0, 4, 1")
    p(f"v_lshlrev_b32 {v(t1)}, 2, {v(t1)}")
    p(f"v_and_b32 {v(t2)}, 7, v0")
    p(f"v_xor_b32 {v(t1)}, {v(t1)}, {v(t2)}")
    p(f"v_lshlrev_b32 {v(t1)}, 4, {v(t1)}")
    for hf,(pb,col) in enumerate(((pb0,col0),(pb1,col1))):
        p(f"v_mul_lo_u32 {v(t2)}, {v(t0)}, {s(pb)}")
        p(f"v_add_u32 {v(t2)}, {v(t2)}, {v(t1)}")
        p(f"v_add_u32 {v(vB+2*hf)}, {s(col)}, {v(t2)}")
        p(f"s_lshl_b32 {s(S_T0+6)}, {s(pb)}, 3"); p(f"s_sub_u32 {s(S_T0+6)}, {s(S_T0+6)}, 1024")
        p(f"v_add_u32 {v(vB+2*hf+1)}, {s(S_T0+6)}, {v(vB+2*hf)}")
        p(f"s_lshl_b32 {s(K_PB0+hf)}, {s(pb)}, 6")
    R.release(m)

def dmaA128(p,vA,soff,slot,sc=""):
    p(f"s_add_u32 m0, {s(K_A)}, {slot}")
    for q in range(4):
        off=f" offset:{q*1024}" if q else ""
        p(f"buffer_load_dwordx4 {v(vA+q)}, {srd(SRD_A)}, {soff} offen{off}{sc} lds")
    return 4
def dmaB128(p,vB,kk_sgpr,slot):
    p(f"s_mul_i32 {s(S_T0+1)}, {s(kk_sgpr)}, {s(K_PB0)}")
    p(f"s_mul_i32 {s(S_T0+2)}, {s(kk_sgpr)}, {s(K_PB1)}")
    p(f"s_add_u32 m0, {s(K_B)}, {slot}")
    p(f"buffer_load_dwordx4 {v(vB)}, {srd(SRD_B0)}, {s(S_T0+1)} offen lds")
    p(f"buffer_load_dwordx4 {v(vB+1)}, {srd(SRD_B0)}, {s(S_T0+1)} offen offset:1024 lds")
    p(f"s_add_u32 m0, {s(K_B)}, {slot+8192}")
    p(f"buffer_load_dwordx4 {v(vB+2)}, {srd(SRD_B1)}, {s(S_T0+2)} offen lds")
    p(f"buffer_load_dwordx4 {v(vB+3)}, {srd(SRD_B1)}, {s(S_T0+2)} offen offset:1024 lds")
    return 4
def kk_of(p,i,dst):
    p(f"s_add_u32 {s(dst)}, {s(S_ROT)}, {i}"); p(f"s_and_b32 {s(dst)}, {s(dst)}, 7")

class SqStats:
    def __init__(self,R):
        self.vaddr=R.alloc(1); self.d=R.alloc(16,4); self.acc=R.alloc(8,4); self.t=R.alloc(4)
    def init(self,p,R):
        p(f"v_lshlrev_b32 {v(self.vaddr)}, 4, v0")
        p(f"v_add_u32 {v(self.vaddr)}, {s(K_A)}, {v(self.vaddr)}")
        for k in range(8): p(f"v_mov_b32 {v(self.acc+k)}, 0")
    def accumulate(self,p,slot,i):
        for q in range(4): p(f"ds_read_b128 {vr(self.d+4*q,4)}, {v(self.vaddr)} offset:{slot+q*1024}")
        for q in range(4):
            p(f"s_waitcnt lgkmcnt({3-q})")
            for k in range(0,4,2):
                d=self.d+4*q+k; t=self.t
                p(f"v_lshlrev_b32 {v(t)}, 16, {v(d)}"); p(f"v_and_b32 {v(t+1)}, 0xffff0000, {v(d)}")
                p(f"v_lshlrev_b32 {v(t+2)}, 16, {v(d+1)}"); p(f"v_and_b32 {v(t+3)}, 0xffff0000, {v(d+1)}")
                p(f"v_fmac_f32 {v(self.acc+q)}, {v(t)}, {v(t)}"); p(f"v_fmac_f32 {v(self.acc+4+q)}, {v(t+1)}, {v(t+1)}")
                p(f"v_fmac_f32 {v(self.acc+q)}, {v(t+2)}, {v(t+2)}"); p(f"v_fmac_f32 {v(self.acc+4+q)}, {v(t+3)}, {v(t+3)}")
    def finish(self,p,R):
        for q in range(4): p(f"v_add_f32 {v(self.acc+q)}, {v(self.acc+q)}, {v(self.acc+4+q)}")
        for mod in ("quad_perm:[1,0,3,2]","quad_perm:[2,3,0,1]","row_half_mirror"):
            for k in range(4): p(f"v_add_f32_dpp {v(self.acc+k)}, {v(self.acc+k)}, {v(self.acc+k)} {mod} row_mask:0xf bank_mask:0xf")
        t=self.t
        p(f"v_lshrrev_b32 {v(t)}, 3, v0"); p(f"v_lshlrev_b32 {v(t)}, 2, {v(t)}")
        p(f"s_lshl_b32 {s(S_T0)}, {s(S_W)}, 7"); p(f"s_add_u32 {s(S_T0)}, {s(S_T0)}, {L_STATS+1024}")
        p(f"v_add_u32 {v(t)}, {s(S_T0)}, {v(t)}")
        for q in range(4): p(f"ds_write_b32 {v(t)}, {v(self.acc+q)} offset:{q*32}")
        p("s_waitcnt lgkmcnt(0)")

def ring(p,vq,n,issue,work=None,pre=2,stampname=None):
    for i in range(min(pre,n)): issue(i)
    for i in range(n):
        vq.need(('st',i))
        if i==0 and stampname: stamp(p,stampname)
        p("s_barrier")
        if work: work(i)
        if i+pre<n: issue(i+pre)

def b64_voffs(p,R,dst):
    m=R.mark(); t0=R.alloc(); t1=R.alloc()
    p(f"v_lshrrev_b32 {v(t0)}, 3, v0")
    p(f"s_lshl_b32 {s(S_T0)}, {s(S_W)}, 5")
    p(f"v_add_u32 {v(t0)}, {s(S_T0)}, {v(t0)}")
    p(f"v_lshlrev_b32 {v(t0)}, 10, {v(t0)}")
    p(f"v_bfe_u32 {v(t1)}, v0, 4, 1")
    p(f"v_lshlrev_b32 {v(t1)}, 2, {v(t1)}")
    p(f"v_and_b32 {v(dst)}, 7, v0")
    p(f"v_xor_b32 {v(t1)}, {v(t1)}, {v(dst)}")
    p(f"v_lshlrev_b32 {v(t1)}, 4, {v(t1)}")
    p(f"v_add_u32 {v(t0)}, {v(t0)}, {v(t1)}")
    p(f"s_lshl_b32 {s(S_T0)}, {s(S_C8)}, 7")
    p(f"v_add_u32 {v(dst)}, {s(S_T0)}, {v(t0)}")
    for q in range(1,4): p(f"v_add_u32 {v(dst+q)}, {7*1024}, {v(dst+q-1)}")
    R.release(m)
def a64_voffs(p,R,dst,pitch,row_shift=0,check=False):
    m=R.mark(); t0=R.alloc(); t1=R.alloc(); t2=R.alloc(); t3=R.alloc()
    p(f"v_lshrrev_b32 {v(t0)}, 4, v0")
    p(f"s_lshl_b32 {s(S_T0)}, {s(S_R64)}, 6")
    p(f"s_lshl_b32 {s(S_T0+1)}, {s(S_W)}, 4")
    p(f"s_add_u32 {s(S_T0)}, {s(S_T0)}, {s(S_T0+1)}")
    p(f"v_and_b32 {v(t1)}, 15, v0")
    p(f"s_mov_b32 {s(S_T0+2)}, {pitch}")
    for q in range(4):
        p(f"v_add_u32 {v(t2)}, {4*q}, {v(t0)}")
        p(f"v_xor_b32 {v(t3)}, {v(t2)}, {v(t1)}")
        p(f"v_lshlrev_b32 {v(t3)}, 4, {v(t3)}")
        p(f"v_add_u32 {v(t2)}, {s(S_T0)}, {v(t2)}")
        if row_shift: p(f"v_add_u32 {v(t2)}, {(-row_shift)&0xffffffff}, {v(t2)}")
        p(f"v_mul_lo_u32 {v(dst+q)}, {v(t2)}, {s(S_T0+2)}")
        p(f"v_add_u32 {v(dst+q)}, {v(dst+q)}, {v(t3)}")
        if q: p(f"v_add_u32 {v(dst+q)}, {(-q*1024)&0xffffffff}, {v(dst+q)}")
        if check:
            p(f"v_cmp_gt_u32 vcc, 2048, {v(t2)}")
            p(f"v_mov_b32 {v(t3)}, 0x80000000")
            p(f"v_cndmask_b32 {v(dst+q)}, {v(t3)}, {v(dst+q)}, vcc")
    R.release(m)
def dma64(p,vofs,srdreg,soff,slot,sc=""):
    p(f"s_add_u32 m0, {s(K_A)}, {slot}")
    for q in range(4):
        off=f" offset:{q*1024}" if q else ""
        p(f"buffer_load_dwordx4 {v(vofs+q)}, {srd(srdreg)}, {soff} offen{off}{sc} lds")
    return 4
def p24_ids(p):
    p(f"s_lshl_b32 {s(S_R64)}, {s(S_X)}, 2")
    p(f"s_and_b32 {s(S_T0)}, {s(S_J)}, 3")
    p(f"s_add_u32 {s(S_R64)}, {s(S_R64)}, {s(S_T0)}")
    p(f"s_lshr_b32 {s(S_C8)}, {s(S_J)}, 2")
```

```python
from helper import *
C_K=S_K

def row_base(p,dst):
    p(f"s_lshl_b32 {s(dst)}, {s(S_RT)}, 1"); p(f"s_add_u32 {s(dst)}, {s(dst)}, {s(S_WR)}"); p(f"s_lshl_b32 {s(dst)}, {s(dst)}, 6")

def rowmajor_voff(p,R,dst,pitch):
    m=R.mark(); t=R.alloc()
    p(f"v_lshrrev_b32 {v(t)}, 2, v0")
    p(f"v_mul_u32_u24 {v(t)}, {pitch}, {v(t)}")
    p(f"v_and_b32 {v(dst)}, 3, v0")
    p(f"v_lshlrev_b32 {v(dst)}, 4, {v(dst)}")
    p(f"v_add_u32 {v(dst)}, {v(dst)}, {v(t)}")
    R.release(m)

def block_pipeline(p,R,X,blocks,pk,rb,tag='x'):
    q=LgkQ(p)
    def stores(b):
        comp,mode,st=blocks[b]
        q.need({('r',b)})
        for t in range(2): st(p,rb+8*(b%2)+4*t,t)
    for b,(comp,mode,st) in enumerate(blocks):
        comp(p)
        stamp(p,f"{tag}c{b}")
        X.writes(q,pk,b%2)
        X.reads(q,rb+8*(b%2),b%2,('r',b),mode)
        stamp(p,f"{tag}w{b}")
        if b>0: stores(b-1)
        stamp(p,f"{tag}s{b}")
    stores(len(blocks)-1)

def ln_scalars(p,R,sm,sq,o):
    m=R.mark(); t=R.alloc()
    p(f"v_mul_f32 {v(sm)}, {f32(1/512)}, {v(sm)}")
    p(f"v_mul_f32 {v(t)}, {f32(1/512)}, {v(sq)}")
    p(f"v_fma_f32 {v(t)}, -{v(sm)}, {v(sm)}, {v(t)}")
    p(f"v_max_f32 {v(t)}, 0, {v(t)}")
    p(f"v_add_f32 {v(t)}, {f32(1e-5)}, {v(t)}")
    p(f"v_rsq_f32 {v(o)}, {v(t)}")
    p(f"v_mul_f32 {v(o+1)}, -{v(sm)}, {v(o)}")
    R.release(m)

CS_MASK_LO=0x00030003
def cs_write_addr(p,dst,base_sgpr):
    p(f"v_and_b32 {v(dst)}, 1, v0"); p(f"v_lshlrev_b32 {v(dst)}, 6, {v(dst)}")
    p(f"v_lshrrev_b32 {v(dst+1)}, 4, v0"); p(f"v_lshlrev_b32 {v(dst+1)}, 4, {v(dst+1)}")
    p(f"v_add_u32 {v(dst)}, {v(dst)}, {v(dst+1)}")
    p(f"v_add_u32 {v(dst)}, {s(base_sgpr)}, {v(dst)}")

def zero_counters(p,R):
    m=R.mark(); a=R.alloc(); d=R.alloc()
    p(f"s_cmp_lg_u32 {s(S_WAVE)}, 0"); p("s_cbranch_scc1 L_nozero")
    p(f"v_lshlrev_b32 {v(a)}, 2, v0"); p(f"v_add_u32 {v(a)}, {L_CNT}, {v(a)}"); p(f"v_mov_b32 {v(d)}, 0")
    p("s_mov_b32 exec_lo, 0xffff"); p("s_mov_b32 exec_hi, 0")
    p(f"ds_write_b32 {v(a)}, {v(d)}")
    p("s_mov_b64 exec, -1")
    p("s_waitcnt lgkmcnt(0)")
    p.label("L_nozero")
    R.release(m)

def unit_wg(p,dst,hd,half,t,u):
    p(f"v_and_b32 {v(t)}, 7, {v(hd)}"); p(f"v_lshlrev_b32 {v(t)}, 1, {v(t)}"); p(f"v_or_b32 {v(t)}, {v(t)}, {v(half)}")
    p(f"v_lshrrev_b32 {v(u)}, 3, {v(hd)}"); p(f"v_add_u32 {v(u)}, 11, {v(u)}")
    tile3_wg(p,dst,t,u,half)

def push1(p,R,kind,PA):
    m=R.mark(); a=R.alloc(); b=R.alloc(); t=R.alloc(); u=R.alloc(); rg=R.alloc(); w=R.alloc()
    if kind=='KV':
        p(f"v_lshlrev_b32 {v(a)}, 3, v0"); p(f"v_add_u32 {v(a)}, {s(S_CT)}, {v(a)}")
        p(f"v_mov_b32 {v(b)}, {s(S_RT)}")
        flag_addr(p,PA,a,b,FL(3))
        p(f"s_mov_b32 {s(S_MASK)}, -1"); p(f"s_mov_b32 {s(S_MASK+1)}, 0")
    else:
        p(f"s_lshl_b32 {s(S_T0)}, {s(S_RT)}, 1"); p(f"s_sub_u32 {s(S_T0)}, {s(S_T0)}, 1")
        p(f"v_bfe_u32 {v(t)}, v0, 3, 2"); p(f"v_add_u32 {v(t)}, {s(S_T0)}, {v(t)}")
        p(f"v_and_b32 {v(u)}, 7, v0")
        tile24_wg(p,a,t,u,b)
        p(f"v_lshrrev_b32 {v(u)}, 1, {v(t)}")
        p(f"s_sub_u32 {s(S_T0)}, {s(S_CT)}, 8"); p(f"s_add_u32 {s(S_T0+1)}, {s(S_T0)}, 8")
        p(f"v_mov_b32 {v(b)}, {s(S_T0+1)}"); p(f"v_mov_b32 {v(rg)}, {s(S_T0)}")
        p(f"v_cmp_eq_u32 vcc, {s(S_RT)}, {v(u)}")
        p(f"v_cndmask_b32 {v(b)}, {v(b)}, {v(rg)}, vcc")
        p(f"v_cmp_gt_u32 vcc, 32, {v(t)}")
        p(f"s_and_b32 {s(S_MASK)}, vcc_lo, -1"); p(f"s_mov_b32 {s(S_MASK+1)}, 0xf")
        flag_addr(p,PA,a,b,FL(0))
        p(f"s_lshl_b32 {s(S_T0)}, {s(S_T0)}, 2")
        p(f"v_and_b32 {v(t)}, 3, v0"); p(f"v_add_u32 {v(t)}, {s(S_T0)}, {v(t)}")
        p(f"s_lshr_b32 {s(S_T0)}, {s(S_RT)}, 1"); p(f"v_mov_b32 {v(u)}, {s(S_T0)}")
        tile24_wg(p,a,t,u,b)
        p(f"s_and_b32 {s(S_T0)}, {s(S_RT)}, 1"); p(f"s_add_u32 {s(S_T0)}, {s(S_T0)}, 16"); p(f"v_mov_b32 {v(b)}, {s(S_T0)}")
        flag_addr(p,u,a,b,FL(3))
        p(f"v_cmp_lt_u32 vcc, 31, v0")
        p(f"v_cndmask_b32 {v(PA)}, {v(PA)}, {v(u)}, vcc")
    R.release(m)

RING_A=[SA[i%4] for i in range(8)]; RING_B=[SB[i%4] for i in range(8)]

def xstats_prologue(p,R):
    m=R.mark()
    x=R.alloc(16,4); gw=R.alloc(4,4); a=R.alloc(12,4); one=R.alloc(1); vl=R.alloc(1); PS=R.alloc(1); t=R.alloc(2,2)
    p(f"v_lshlrev_b32 {v(vl)}, 4, v0")
    set_srd(p,SRD_T,S_AX,0x200000)
    p(f"s_sub_u32 {s(S_T0)}, {s(S_CT)}, 8"); p(f"s_lshl_b32 {s(S_T0)}, {s(S_T0)}, 2"); p(f"s_add_u32 {s(S_T0)}, {s(S_T0)}, {s(S_WAVE)}"); p(f"s_lshl_b32 {s(S_T0)}, {s(S_T0)}, 2")
    p(f"s_lshl_b32 {s(S_T0+1)}, {s(S_RT)}, 7"); p(f"s_add_u32 {s(C_K+5)}, {s(S_T0)}, {s(S_T0+1)}")
    p(f"s_lshl_b32 {s(S_T0)}, {s(C_K+5)}, 10")
    for i in range(4): p(f"buffer_load_dwordx4 {vr(x+4*i,4)}, {v(vl)}, {srd(SRD_T)}, {s(S_T0)} offen offset:{i*1024}")
    set_srd(p,SRD_T,S_GW,1024)
    p(f"buffer_load_dwordx4 {vr(gw,4)}, {v(vl)}, {srd(SRD_T)}, 0 offen")
    p(f"v_mov_b32 {v(one)}, 0x3f803f80")
    for k in range(12): p(f"v_mov_b32 {v(a+k)}, 0")
    p(f"v_mov_b32 {v(t)}, {s(S_RT)}"); p(f"v_add_u32 {v(t+1)}, 8, v0")
    u=R.alloc(2)
    tile3_wg(p,u,t,t+1,u+1)
    p(f"s_sub_u32 {s(S_T0)}, {s(S_CT)}, 8"); p(f"v_mov_b32 {v(t)}, {s(S_T0)}")
    flag_addr(p,PS,u,t,FL(4))
    return (m,x,gw,a,one,PS,t)
def xstats_compute(p,R,st):
    m,x,gw,a,one,PS,t=st
    p("s_waitcnt vmcnt(0)")
    for i in range(4):
        for k in range(4):
            d=x+4*i+k
            p(f"v_dot2_f32_bf16 {v(a+i)}, {v(d)}, {v(one)}, {v(a+i)}")
            p(f"v_dot2_f32_bf16 {v(a+4+i)}, {v(d)}, {v(d)}, {v(a+4+i)}")
            p(f"v_dot2_f32_bf16 {v(a+8+i)}, {v(d)}, {v(gw+k)}, {v(a+8+i)}")
    for c in range(3):
        b=a+4*c
        p(f"v_permlane32_swap_b32 {v(b)}, {v(b+2)}"); p(f"v_permlane32_swap_b32 {v(b+1)}, {v(b+3)}")
    for c in range(3):
        b=a+4*c
        p(f"v_add_f32 {v(b)}, {v(b)}, {v(b+2)}"); p(f"v_add_f32 {v(b+1)}, {v(b+1)}, {v(b+3)}")
    for c in range(3): p(f"v_permlane16_swap_b32 {v(a+4*c)}, {v(a+4*c+1)}")
    for c in range(3): p(f"v_add_f32 {v(a+4*c)}, {v(a+4*c)}, {v(a+4*c+1)}")
    for mod in ("quad_perm:[1,0,3,2]","quad_perm:[2,3,0,1]","row_half_mirror","row_mirror"):
        for c in range(3): p(f"v_add_f32_dpp {v(a+4*c)}, {v(a+4*c)}, {v(a+4*c)} {mod} row_mask:0xf bank_mask:0xf")
    z=a+8
    p(f"v_mul_f32 {v(z)}, {f32(-LOG2E)}, {v(z)}"); p(f"v_exp_f32 {v(z)}, {v(z)}"); p(f"v_add_f32 {v(z)}, 1.0, {v(z)}"); p(f"v_rcp_f32 {v(z)}, {v(z)}")
    p(f"v_mov_b32 {v(t)}, {v(a)}"); p(f"v_mov_b32 {v(t+1)}, {v(a+4)}")
    p(f"v_lshrrev_b32 {v(x)}, 4, v0"); p(f"v_lshlrev_b32 {v(x+1)}, 3, {v(x)}"); p(f"v_lshlrev_b32 {v(x)}, 2, {v(x)}")
    p(f"s_lshl_b32 {s(S_T0)}, {s(C_K+5)}, 3"); p(f"s_add_u32 {s(S_T0)}, {s(S_T0)}, {ST1_OFF:#x}")
    p(f"s_lshl_b32 {s(S_T0+1)}, {s(C_K+5)}, 2"); p(f"s_add_u32 {s(S_T0+1)}, {s(S_T0+1)}, {G_OFF:#x}")
    p("s_mov_b32 exec_lo, 0x00010001"); p("s_mov_b32 exec_hi, 0x00010001")
    p(f"buffer_store_dwordx2 {vr(t,2)}, {v(x+1)}, {srd(SRD_WS)}, {s(S_T0)} offen sc1")
    p(f"buffer_store_dword {v(z)}, {v(x)}, {srd(SRD_WS)}, {s(S_T0+1)} offen sc1")
    p("s_mov_b64 exec, -1")
    return PS

def compute_p1_QW(p,R,G,X,PA):
    p.comment("==== P1 compute: QW tile (64 q cols + 64 w1 cols)")
    m0=R.mark()
    p(f"s_mov_b32 {s(S_SWN)}, 0"); p(f"s_mov_b32 {s(S_SWM)}, 0")
    xs=xstats_prologue(p,R)
    G.setup(p,R,cs=True); X.setup(p,R)
    p("s_waitcnt lgkmcnt(0)"); p(";EPOCH")
    PS=xstats_compute(p,R,xs)
    PS2=R.alloc(1)
    p(f"v_mov_b32 {v(PS2)}, {v(PS)}")
    keep=R.mark()
    push1(p,R,'QW',PA)
    p(f"s_mov_b32 {s(C_K+2)}, {s(S_MASK)}"); p(f"s_mov_b32 {s(C_K+3)}, {s(S_MASK+1)}")
    def hook(i):
        if i==2:
            p(f"s_mov_b32 {s(S_MASK)}, 0xff"); p(f"s_mov_b32 {s(S_MASK+1)}, 0")
            arrive_push(p,R,C_ST,4,PS2,"xst")
            p(f"s_mov_b32 {s(S_MASK)}, {s(C_K+2)}"); p(f"s_mov_b32 {s(S_MASK+1)}, {s(C_K+3)}")
    vGo=R.alloc(1); vq=R.alloc(1); vcw=R.alloc(2); vcr=R.alloc(1); vst=R.alloc(1); KC=R.alloc(4,2)
    rowmajor_voff(p,R,vGo,1024)
    p(f"v_lshlrev_b32 {v(vq)}, 4, v0")
    gelu_consts(p,KC)
    p(f"s_lshl_b32 {s(S_T0+2)}, {s(S_WAVE)}, 7"); p(f"s_add_u32 {s(S_T0+2)}, {s(S_T0+2)}, {L_CS}")
    cs_write_addr(p,vcw,S_T0+2)
    p(f"v_lshrrev_b32 {v(vcr)}, 5, v0"); p(f"v_lshlrev_b32 {v(vcr)}, 4, {v(vcr)}"); p(f"v_add_u32 {v(vcr)}, {s(S_T0+2)}, {v(vcr)}")
    p(f"v_and_b32 {v(vst)}, 31, v0"); p(f"v_lshlrev_b32 {v(vst)}, 3, {v(vst)}")
    p(f"s_lshl_b32 {s(S_T0)}, {s(S_WR)}, 9"); p(f"s_add_u32 {s(S_T0)}, {s(S_T0)}, {L_STATS}"); p(f"v_add_u32 {v(vst)}, {s(S_T0)}, {v(vst)}")
    row_base(p,C_K+1)
    p(f"s_lshl_b32 {s(C_K)}, {s(C_K+1)}, 10")
    p(f"s_sub_u32 {s(S_T0)}, {s(S_CT)}, 8"); p(f"s_lshl_b32 {s(S_T0+1)}, {s(S_T0)}, 7"); p(f"s_add_u32 {s(C_K)}, {s(C_K)}, {s(S_T0+1)}")
    p(f"s_lshl_b32 {s(S_T0+1)}, {s(S_WC)}, 6"); p(f"s_add_u32 {s(C_K)}, {s(C_K)}, {s(S_T0+1)}")
    if H_OFF: p(f"s_add_u32 {s(C_K)}, {s(C_K)}, {H_OFF:#x}")
    p(f"s_lshl_b32 {s(C_K+1)}, {s(C_K+1)}, 5")
    p(f"s_lshl_b32 {s(S_T0)}, {s(S_T0)}, 2"); p(f"s_lshl_b32 {s(S_T0+1)}, {s(S_WC)}, 1"); p(f"s_add_u32 {s(S_T0)}, {s(S_T0)}, {s(S_T0+1)}")
    p(f"s_lshl_b32 {s(S_T0)}, {s(S_T0)}, 16"); p(f"s_add_u32 {s(C_K+1)}, {s(C_K+1)}, {s(S_T0)}"); p(f"s_add_u32 {s(C_K+1)}, {s(C_K+1)}, {Q_OFF:#x}")
    G.main(p,RING_A,RING_B,"TT",cs=1,stage_hook=hook)
    fb=G.fb; cs=fb; T=fb+16
    st=R.alloc(4,2); S=R.alloc(4,2); pk=R.alloc(8,2); rb=R.alloc(16,4)
    p(f"s_mov_b32 exec_lo, {CS_MASK_LO:#x}"); p(f"s_mov_b32 exec_hi, {CS_MASK_LO:#x}")
    p(f"ds_write_b128 {v(vcw)}, {vr(G.xacc,4)}")
    p("s_mov_b64 exec, -1")
    for j in range(4): p(f"ds_read_b128 {vr(cs+4*j,4)}, {v(vcr)} offset:{j*32}")
    p("s_barrier")
    stamp(p,"e1_b8")
    for mb in range(2): p(f"ds_read_b64 {vr(st+2*mb,2)}, {v(vst)} offset:{mb*256}")
    p("s_waitcnt lgkmcnt(0)")
    for mb in range(2): ln_scalars(p,R,st+2*mb,st+2*mb+1,S+2*mb)
    def hblk(mb):
        def comp(p):
            ln_gelu_block(p,G.A(mb,1),cs,S+2*mb,T,KC,pk); stamp(p,f"e1_blk{mb}")
        def st_(p,regs,t):
            p(f"s_add_u32 {s(S_T0)}, {s(C_K)}, {(mb*32+t*16)*1024}")
            p(f"buffer_store_dwordx4 {vr(regs,4)}, {v(vGo)}, {srd(SRD_WS)}, {s(S_T0)} offen sc1")
        return (comp,'row',st_)
    def qblk(mb):
        def comp(p): pack16(p,pk,G.A(mb,0))
        def st_(p,regs,t):
            p(f"s_add_u32 {s(S_T0)}, {s(C_K+1)}, {mb*1024+t*65536}")
            p(f"buffer_store_dwordx4 {vr(regs,4)}, {v(vq)}, {srd(SRD_WS)}, {s(S_T0)} offen sc1")
        return (comp,'head',st_)
    block_pipeline(p,R,X,[hblk(0),hblk(1),qblk(0),qblk(1)],pk,rb,tag='qw')
    R.release(m0)

def compute_p1_KV(p,R,G,X,PA):
    p.comment("==== P1 compute: KV tile")
    m0=R.mark()
    p(f"s_mov_b32 {s(S_SWN)}, 0"); p(f"s_mov_b32 {s(S_SWM)}, 0")
    G.setup(p,R); push1(p,R,'KV',PA)
    KL=R.alloc(2,2); wA=R.alloc(4,4); wB=R.alloc(4,4); T=R.alloc(20,2); vPW=R.alloc(4); vPR=R.alloc(2); vwp=R.alloc(1); vx=R.alloc(2)
    KVa=R.alloc(16,4); KVb=R.alloc(16,4); PK=R.alloc(16,4); ph=G.fe[0]; assert G.fe[1]==ph+4; t=R.alloc(4)
    p(f"v_mov_b32 {v(KL)}, {f32(LOG2E)}"); p(f"v_mov_b32 {v(KL+1)}, {f32(-LOG2E)}")
    p(f"v_bfe_u32 {v(t)}, v0, 2, 2"); p(f"v_lshrrev_b32 {v(t+1)}, 5, v0"); p(f"v_lshlrev_b32 {v(t+1)}, 2, {v(t+1)}")
    p(f"v_add_u32 {v(t)}, {v(t)}, {v(t+1)}"); p(f"v_lshlrev_b32 {v(t)}, 5, {v(t)}")
    p(f"v_and_b32 {v(t+1)}, 3, v0"); p(f"v_lshlrev_b32 {v(t+1)}, 3, {v(t+1)}"); p(f"v_add_u32 {v(t)}, {v(t)}, {v(t+1)}")
    p(f"s_lshl_b32 {s(S_T0)}, {s(S_WC)}, 10"); p(f"s_add_u32 {s(S_T0)}, {s(S_T0)}, {L_WPHI}")
    p(f"v_add_u32 {v(vwp)}, {s(S_T0)}, {v(t)}")
    p(f"s_lshl_b32 {s(S_T0)}, {s(S_WAVE)}, 12"); p(f"s_add_u32 {s(S_T0)}, {s(S_T0)}, {M_SCR}")
    p(f"v_lshrrev_b32 {v(t+1)}, 5, v0"); p(f"v_bfe_u32 {v(t+2)}, v0, 1, 3"); p(f"v_xor_b32 {v(t+1)}, {v(t+1)}, {v(t+2)}")
    p(f"v_lshlrev_b32 {v(t+1)}, 3, {v(t+1)}"); p(f"v_and_b32 {v(t+2)}, 31, v0"); p(f"v_lshlrev_b32 {v(t+2)}, 6, {v(t+2)}")
    p(f"v_add_u32 {v(t+2)}, {s(S_T0)}, {v(t+2)}")
    for jj in range(4):
        p(f"v_xor_b32 {v(t+3)}, {jj<<4}, {v(t+1)}"); p(f"v_add_u32 {v(vPW+jj)}, {v(t+2)}, {v(t+3)}")
    p(f"v_lshrrev_b32 {v(t+1)}, 5, v0"); p(f"v_bfe_u32 {v(t+2)}, v0, 2, 2"); p(f"v_lshlrev_b32 {v(t+3)}, 2, {v(t+1)}")
    p(f"v_add_u32 {v(t+3)}, {v(t+3)}, {v(t+2)}"); p(f"v_lshlrev_b32 {v(t+3)}, 6, {v(t+3)}"); p(f"v_add_u32 {v(t+3)}, {s(S_T0)}, {v(t+3)}")
    p(f"v_lshlrev_b32 {v(t+1)}, 1, {v(t+1)}"); p(f"v_bfe_u32 {v(t+2)}, v0, 3, 1"); p(f"v_add_u32 {v(t+1)}, {v(t+1)}, {v(t+2)}")
    p(f"v_bfe_u32 {v(t+2)}, v0, 4, 1"); p(f"v_lshlrev_b32 {v(t+2)}, 2, {v(t+2)}"); p(f"v_and_b32 {v(vPR)}, 3, v0")
    p(f"v_add_u32 {v(t+2)}, {v(t+2)}, {v(vPR)}"); p(f"v_xor_b32 {v(t+1)}, {v(t+1)}, {v(t+2)}"); p(f"v_lshlrev_b32 {v(t+1)}, 3, {v(t+1)}")
    p(f"v_add_u32 {v(vPR)}, {v(t+3)}, {v(t+1)}"); p(f"v_xor_b32 {v(t+1)}, 32, {v(t+1)}"); p(f"v_add_u32 {v(vPR+1)}, {v(t+3)}, {v(t+1)}")
    p(f"v_lshlrev_b32 {v(t)}, 4, v0"); p(f"v_add_u32 {v(vx)}, {s(S_T0)}, {v(t)}")
    p(f"s_lshl_b32 {s(S_T0+1)}, {s(S_WAVE)}, 12"); p(f"s_xor_b32 {s(S_T0+1)}, {s(S_T0+1)}, {2<<12}"); p(f"s_add_u32 {s(S_T0+1)}, {s(S_T0+1)}, {M_SCR}")
    p(f"v_add_u32 {v(vx+1)}, {s(S_T0+1)}, {v(t)}")
    p(f"s_lshl_b32 {s(C_K)}, {s(S_CT)}, 2"); p(f"s_lshl_b32 {s(S_T0+1)}, {s(S_WC)}, 1"); p(f"s_add_u32 {s(C_K)}, {s(C_K)}, {s(S_T0+1)}")
    p(f"s_add_u32 {s(C_K)}, {s(C_K)}, {s(S_WR)}"); p(f"s_lshl_b32 {s(C_K)}, {s(C_K)}, 4"); p(f"s_add_u32 {s(C_K)}, {s(C_K)}, {s(S_RT)}")
    p(f"s_lshl_b32 {s(C_K)}, {s(C_K)}, 11"); p(f"s_add_u32 {s(C_K)}, {s(C_K)}, {KVP_OFF:#x}")
    p("s_waitcnt lgkmcnt(0)"); p(";EPOCH")
    G.main(p,RING_A,RING_B,"TN")
    fb=G.fb; kb=fb; vb=fb+8; vb2=fb+16; Pp=fb+24; Nn=fb+28
    p(f"ds_read_b64_tr_b16 {vr(wA,2)}, {v(vwp)}"); p(f"ds_read_b64_tr_b16 {vr(wA+2,2)}, {v(vwp)} offset:256")
    p(f"ds_read_b64_tr_b16 {vr(wB,2)}, {v(vwp)} offset:512"); p(f"ds_read_b64_tr_b16 {vr(wB+2,2)}, {v(vwp)} offset:768")
    p("s_barrier")
    p("s_waitcnt lgkmcnt(0)")
    p("s_mov_b32 exec_lo, 0xffff0000"); p("s_mov_b32 exec_hi, 0xffff0000")
    for k in range(4): p(f"v_mov_b32 {v(wA+k)}, 0")
    p("s_mov_b32 exec_lo, 0x0000ffff"); p("s_mov_b32 exec_hi, 0x0000ffff")
    for k in range(4): p(f"v_mov_b32 {v(wB+k)}, 0")
    p("s_mov_b64 exec, -1")
    for mb in range(2):
        K=G.A(mb,0); V=G.A(mb,1)
        pack16(p,kb,K)
        p(f"v_mfma_f32_32x32x16_bf16 {vr(PK,16)}, {vr(wA,4)}, {vr(kb,4)}, 0")
        p(f"v_mfma_f32_32x32x16_bf16 {vr(PK,16)}, {vr(wB,4)}, {vr(kb+4,4)}, {vr(PK,16)}")
        pack16(p,vb,V)
        for k in range(8): p(f"v_mov_b32 {v(vb2+k)}, 0x3f803f80")
        for k in range(8): p(f"v_permlane16_swap_b32 {v(vb+k)}, {v(vb2+k)}")
        for hd in range(2):
            softmax_pm(p,PK+8*hd,Pp,Nn,T,KL)
            o=hd*2048
            p(f"ds_write_b64 {v(vPW+0)}, {vr(Pp,2)} offset:{o}"); p(f"ds_write_b64 {v(vPW+1)}, {vr(Pp+2,2)} offset:{o}")
            p(f"ds_write_b64 {v(vPW+2)}, {vr(Nn,2)} offset:{o}"); p(f"ds_write_b64 {v(vPW+3)}, {vr(Nn+2,2)} offset:{o}")
            if hd==0:
                for tt in range(2):
                    p(f"ds_read_b64_tr_b16 {vr(ph+4*tt,2)}, {v(vPR)} offset:{tt*1024}")
                    p(f"ds_read_b64_tr_b16 {vr(ph+4*tt+2,2)}, {v(vPR+1)} offset:{tt*1024+512}")
        p("s_waitcnt lgkmcnt(4)")
        for tt in range(2):
            c="0" if (mb==0 and tt==0) else vr(KVa,16)
            p(f"v_mfma_f32_32x32x16_bf16 {vr(KVa,16)}, {vr(ph+4*tt,4)}, {vr(vb+4*tt,4)}, {c}")
        for tt in range(2):
            p(f"ds_read_b64_tr_b16 {vr(T+4*tt,2)}, {v(vPR)} offset:{2048+tt*1024}")
            p(f"ds_read_b64_tr_b16 {vr(T+4*tt+2,2)}, {v(vPR+1)} offset:{2048+tt*1024+512}")
        p("s_waitcnt lgkmcnt(0)")
        for tt in range(2):
            c="0" if (mb==0 and tt==0) else vr(KVb,16)
            p(f"v_mfma_f32_32x32x16_bf16 {vr(KVb,16)}, {vr(T+4*tt,4)}, {vr(vb2+4*tt,4)}, {c}")
    u=uid()
    p(f"s_cmp_eq_u32 {s(S_WR)}, 0"); p(f"s_cbranch_scc1 L_kvx{u}")
    for q in range(4): p(f"ds_write_b128 {v(vx)}, {vr(KVa+4*q,4)} offset:{q*1024}")
    for k in range(16): p(f"v_mov_b32 {v(KVa+k)}, {v(KVb+k)}")
    p(f"s_branch L_kvx{u}b")
    p.label(f"L_kvx{u}")
    for q in range(4): p(f"ds_write_b128 {v(vx)}, {vr(KVb+4*q,4)} offset:{q*1024}")
    p.label(f"L_kvx{u}b")
    p("s_waitcnt lgkmcnt(0)")
    p(f"s_lshl_b32 {s(S_T0)}, {s(S_WAVE)}, 2"); p(f"s_add_u32 {s(S_T0+1)}, {s(S_T0)}, {C_KVX}")
    lds_signal(p,R,addr_expr_sgpr=S_T0+1)
    p(f"s_xor_b32 {s(S_T0)}, {s(S_T0)}, 8"); p(f"s_add_u32 {s(S_T0+1)}, {s(S_T0)}, {C_KVX}")
    lds_spin(p,R,1,addr_sgpr=S_T0+1)
    for q in range(4): p(f"ds_read_b128 {vr(PK+4*q,4)}, {v(vx+1)} offset:{q*1024}")
    p("s_waitcnt lgkmcnt(0)")
    for k in range(0,16,2): p(f"v_pk_add_f32 {vr(KVa+k,2)}, {vr(KVa+k,2)}, {vr(PK+k,2)}")
    pack16(p,vb,KVa)
    p(f"v_lshlrev_b32 {v(t)}, 4, v0")
    p(f"buffer_store_dwordx4 {vr(vb,4)}, {v(t)}, {srd(SRD_WS)}, {s(C_K)} offen sc1")
    p(f"buffer_store_dwordx4 {vr(vb+4,4)}, {v(t)}, {srd(SRD_WS)}, {s(C_K)} offen offset:1024 sc1")
    R.release(m0)

def tile64_soff(p,dst):
    p(f"s_lshl_b32 {s(dst)}, {s(S_R64)}, 1"); p(f"s_add_u32 {s(dst)}, {s(dst)}, {s(S_WR)}"); p(f"s_lshl_b32 {s(dst)}, {s(dst)}, 15")
    p(f"s_lshl_b32 {s(S_T0+7)}, {s(S_C8)}, 1"); p(f"s_add_u32 {s(S_T0+7)}, {s(S_T0+7)}, {s(S_WC)}"); p(f"s_lshl_b32 {s(S_T0+7)}, {s(S_T0+7)}, 6")
    p(f"s_add_u32 {s(dst)}, {s(dst)}, {s(S_T0+7)}")

def push2x(p,R,PA):
    m=R.mark(); a=R.alloc(); b=R.alloc(); t=R.alloc(); rt=R.alloc()
    p(f"s_lshr_b32 {s(S_T0)}, {s(S_R64)}, 1"); p(f"v_mov_b32 {v(rt)}, {s(S_T0)}")
    tile3_wg(p,a,rt,0,t)
    p(f"s_and_b32 {s(S_T0)}, {s(S_R64)}, 1"); p(f"s_lshl_b32 {s(S_T0)}, {s(S_T0)}, 3"); p(f"s_add_u32 {s(S_T0)}, {s(S_T0)}, {s(S_C8)}")
    p(f"v_mov_b32 {v(b)}, {s(S_T0)}")
    flag_addr(p,PA,a,b,FL(1))
    p(f"s_mov_b32 {s(S_MASK)}, 0x7ff"); p(f"s_mov_b32 {s(S_MASK+1)}, 0")
    R.release(m)
def compute_p2(p,R,G,X,x1keep,PA,PAo):
    from attn import att_ids, push_o, att_blocks, C_KVF
    m0=R.mark()
    p24_ids(p)
    G.setup(p,R); X.setup(p,R); push2x(p,R,PA)
    att_ids(p); push_o(p,R,PAo)
    vo=R.alloc(1); xr=R.alloc(8,4); hs=R.alloc(8,4); pk=R.alloc(8,2); fa=R.alloc(8,2); fb=R.alloc(8,2)
    rowmajor_voff(p,R,vo,1024)
    tile64_soff(p,C_K)
    set_srd(p,SRD_T,S_AX,0x200000)
    p(f"buffer_load_dwordx4 {vr(xr,4)}, {v(vo)}, {srd(SRD_T)}, {s(C_K)} offen")
    p(f"s_add_u32 {s(S_T0)}, {s(C_K)}, {16*1024}")
    p(f"buffer_load_dwordx4 {vr(xr+4,4)}, {v(vo)}, {srd(SRD_T)}, {s(S_T0)} offen")
    p(f"s_mov_b32 {s(C_K+1)}, 0xffff")
    p(f"s_cmp_eq_u32 {s(S_R64)}, 0"); p(f"s_cselect_b32 {s(C_K+1)}, 0xff, {s(C_K+1)}")
    p(f"s_cmp_eq_u32 {s(S_R64)}, 31"); p(f"s_cselect_b32 {s(C_K+1)}, 0xff, {s(C_K+1)}")
    ab=att_blocks(p,R,S_WAVE); next(ab)
    poll_own(p,R,"p2",0,C_K+1,only_wave=0)
    stamp(p,"p2_flags")
    p("s_waitcnt vmcnt(0)")
    p("s_barrier")
    G.main(p,[8,8,8,8],SA,SB)
    stamp(p,"p2_mend")
    p("s_barrier")
    lds_spin(p,R,1,const=C_KVF)
    next(ab)
    q=LgkQ(p)
    pack16(p,pk,G.acc); X.writes(q,pk,0); X.reads(q,hs,0,'r')
    p("s_waitcnt lgkmcnt(0)")
    for t in range(2):
        unpack8(p,fa,xr+4*t); unpack8(p,fb,hs+4*t)
        for k in range(0,8,2): p(f"v_pk_add_f32 {vr(fa+k,2)}, {vr(fa+k,2)}, {vr(fb+k,2)}")
        for k in range(4): p(f"v_cvt_pk_bf16_f32 {v(x1keep+4*t+k)}, {v(fa+2*k)}, {v(fa+2*k+1)}")
        p(f"s_add_u32 {s(S_T0)}, {s(C_K)}, {X1_OFF+t*16*1024:#x}")
        p(f"buffer_store_dwordx4 {vr(x1keep+4*t,4)}, {v(vo)}, {srd(SRD_WS)}, {s(S_T0)} offen sc1")
    for t in range(2):
        unpack8(p,fa,x1keep+4*t)
        sm=hs+2*t; sq=hs+2*t+1
        p(f"v_mul_f32 {v(sq)}, {v(fa)}, {v(fa)}"); p(f"v_add_f32 {v(sm)}, {v(fa)}, {v(fa+1)}"); p(f"v_fmac_f32 {v(sq)}, {v(fa+1)}, {v(fa+1)}")
        for k in range(2,8):
            p(f"v_add_f32 {v(sm)}, {v(sm)}, {v(fa+k)}"); p(f"v_fmac_f32 {v(sq)}, {v(fa+k)}, {v(fa+k)}")
    for mod in ("quad_perm:[1,0,3,2]","quad_perm:[2,3,0,1]"):
        for k in range(4): p(f"v_add_f32_dpp {v(hs+k)}, {v(hs+k)}, {v(hs+k)} {mod} row_mask:0xf bank_mask:0xf")
    p(f"s_lshl_b32 {s(S_T0)}, {s(S_R64)}, 1"); p(f"s_add_u32 {s(S_T0)}, {s(S_T0)}, {s(S_WR)}"); p(f"s_lshl_b32 {s(S_T0)}, {s(S_T0)}, 4")
    p(f"s_lshl_b32 {s(S_T0+1)}, {s(S_C8)}, 1"); p(f"s_add_u32 {s(S_T0)}, {s(S_T0)}, {s(S_T0+1)}"); p(f"s_add_u32 {s(S_T0)}, {s(S_T0)}, {s(S_WC)}")
    p(f"s_lshl_b32 {s(S_T0)}, {s(S_T0)}, 8"); p(f"s_add_u32 {s(S_T0)}, {s(S_T0)}, {ST_OFF:#x}")
    p(f"v_lshrrev_b32 {v(pk)}, 2, v0"); p(f"v_lshlrev_b32 {v(pk)}, 3, {v(pk)}")
    p("s_mov_b32 exec_lo, 0x11111111"); p("s_mov_b32 exec_hi, 0x11111111")
    p(f"buffer_store_dwordx2 {vr(hs,2)}, {v(pk)}, {srd(SRD_WS)}, {s(S_T0)} offen sc1")
    p(f"buffer_store_dwordx2 {vr(hs+2,2)}, {v(pk)}, {srd(SRD_WS)}, {s(S_T0)} offen offset:128 sc1")
    p("s_mov_b64 exec, -1")
    stamp(p,"e2_epi")
    ab.send("vmcnt(4)")
    arrive_push(p,R,C_X1,4,PA,"p2x"); stamp(p,"e2_push")
    next(ab)
    stamp(p,"c2_att")
    R.release(m0)

def push3(p,R,kind,PA):
    m=R.mark(); a=R.alloc(); b=R.alloc(); t=R.alloc(); r64=R.alloc(); c=R.alloc()
    p(f"s_lshl_b32 {s(S_T0)}, {s(S_RT)}, 1")
    if kind=='W3':
        p(f"v_bfe_u32 {v(r64)}, v0, 3, 1"); p(f"v_add_u32 {v(r64)}, {s(S_T0)}, {v(r64)}"); p(f"v_and_b32 {v(c)}, 7, v0")
        p(f"v_mov_b32 {v(b)}, {s(S_CT)}"); p(f"s_mov_b32 {s(S_MASK)}, 0xffff")
    else:
        p(f"v_bfe_u32 {v(r64)}, v0, 1, 1"); p(f"v_add_u32 {v(r64)}, {s(S_T0)}, {v(r64)}")
        p(f"s_sub_u32 {s(S_T0)}, {s(S_CT)}, 11"); p(f"s_lshl_b32 {s(S_T0)}, {s(S_T0)}, 1")
        p(f"v_and_b32 {v(c)}, 1, v0"); p(f"v_add_u32 {v(c)}, {s(S_T0)}, {v(c)}")
        p(f"v_mov_b32 {v(b)}, 11"); p(f"s_mov_b32 {s(S_MASK)}, 0xf")
    p(f"s_mov_b32 {s(S_MASK+1)}, 0")
    tile24_wg(p,a,r64,c,t)
    flag_addr(p,PA,a,b,FL(2))
    R.release(m)

def compute_p3(p,R,G,X,kind,PA,PAo):
    from attn import o_arrive
    m0=R.mark()
    p(f"s_mov_b32 {s(S_SWM)}, 0")
    if kind=='W3': p(f"s_mov_b32 {s(S_SWN)}, {s(S_WR)}")
    else: p(f"s_mov_b32 {s(S_SWN)}, 0")
    G.setup(p,R,cs=(kind=='W3')); X.setup(p,R); push3(p,R,kind,PA)
    vGo=R.alloc(1); pitch=HID_PITCH if kind=='W3' else 1024
    rowmajor_voff(p,R,vGo,pitch)
    row_base(p,C_K)
    p(f"s_mul_i32 {s(C_K)}, {s(C_K)}, {pitch}")
    if kind=='W3': p(f"s_lshl_b32 {s(S_T0)}, {s(S_CT)}, 8")
    else:
        p(f"s_sub_u32 {s(S_T0)}, {s(S_CT)}, 11"); p(f"s_lshl_b32 {s(S_T0)}, {s(S_T0)}, 8")
    p(f"s_add_u32 {s(C_K)}, {s(C_K)}, {s(S_T0)}"); p(f"s_lshl_b32 {s(S_T0)}, {s(S_WC)}, 6"); p(f"s_add_u32 {s(C_K)}, {s(C_K)}, {s(S_T0)}")
    p(f"s_add_u32 {s(C_K)}, {s(C_K)}, {(HID_OFF if kind=='W3' else A_OFF):#x}")
    p(f"s_lshl_b32 {s(C_K+2)}, {s(S_SWN)}, 7"); p(f"s_xor_b32 {s(C_K+3)}, {s(C_K+2)}, 128")
    p(f"s_add_u32 {s(C_K+2)}, {s(C_K+2)}, {s(C_K)}"); p(f"s_add_u32 {s(C_K+3)}, {s(C_K+3)}, {s(C_K)}")
    if kind=='W3':
        vcw=R.alloc(2); vcr=R.alloc(2); vst=R.alloc(1); KC=R.alloc(4,2)
        gelu_consts(p,KC)
        p(f"v_and_b32 {v(vst)}, 31, v0"); p(f"v_lshlrev_b32 {v(vst)}, 3, {v(vst)}")
        p(f"s_lshl_b32 {s(S_T0)}, {s(S_WR)}, 9"); p(f"s_add_u32 {s(S_T0)}, {s(S_T0)}, {L_ST3}"); p(f"v_add_u32 {v(vst)}, {s(S_T0)}, {v(vst)}")
        p(f"s_lshl_b32 {s(S_T0+2)}, {s(S_WC)}, 7"); p(f"s_add_u32 {s(S_T0+2)}, {s(S_T0+2)}, {L_CS}")
        p(f"s_lshl_b32 {s(S_T0+3)}, {s(S_SWN)}, 8")
        p(f"s_add_u32 {s(S_T0+4)}, {s(S_T0+2)}, {s(S_T0+3)}"); p(f"s_xor_b32 {s(S_T0+3)}, {s(S_T0+3)}, 256"); p(f"s_add_u32 {s(S_T0+5)}, {s(S_T0+2)}, {s(S_T0+3)}")
        cs_write_addr(p,vcw,S_T0+4)
        p(f"v_lshrrev_b32 {v(vcr)}, 5, v0"); p(f"v_lshlrev_b32 {v(vcr)}, 4, {v(vcr)}")
        p(f"v_add_u32 {v(vcr+1)}, {s(S_T0+5)}, {v(vcr)}"); p(f"v_add_u32 {v(vcr)}, {s(S_T0+4)}, {v(vcr)}")
        p(f"s_mov_b32 {s(C_K+1)}, 0xffff")
    else: p(f"s_mov_b32 {s(C_K+1)}, -1")
    o_arrive(p,R,PAo,"o_c"+kind)
    poll_own(p,R,f"p3{kind}",1,C_K+1,only_wave=0)
    stamp(p,"p3_flags")
    p("s_barrier")
    G.main(p,RING_A,RING_B,"TT",cs=0 if kind=='W3' else None,ph='m3')
    pk=R.alloc(8,2); rb=R.alloc(16,4)
    def st_fn(mb,nb):
        def f(p,regs,t):
            p(f"s_add_u32 {s(S_T0)}, {s(C_K+2+nb)}, {(mb*32+t*16)*pitch}")
            p(f"buffer_store_dwordx4 {vr(regs,4)}, {v(vGo)}, {srd(SRD_WS)}, {s(S_T0)} offen sc1")
        return f
    if kind=='W3':
        fb=G.fb; cs0=fb; cs1=fb+16; T=R.alloc(16,2); st=R.alloc(16,2); S=R.alloc(4,2)
        for mb in range(2):
            for g in range(4): p(f"ds_read_b64 {vr(st+8*mb+2*g,2)}, {v(vst)} offset:{mb*256+g*1024}")
        p(f"s_mov_b32 exec_lo, {CS_MASK_LO:#x}"); p(f"s_mov_b32 exec_hi, {CS_MASK_LO:#x}")
        p(f"ds_write_b128 {v(vcw)}, {vr(G.xacc,4)}")
        p("s_mov_b64 exec, -1")
        p("s_waitcnt lgkmcnt(0)")
        p("s_barrier")
        for j in range(4): p(f"ds_read_b128 {vr(cs0+4*j,4)}, {v(vcr)} offset:{j*32}")
        for j in range(4): p(f"ds_read_b128 {vr(cs1+4*j,4)}, {v(vcr+1)} offset:{j*32}")
        for mb in range(2):
            a=st+8*mb
            p(f"v_pk_add_f32 {vr(a,2)}, {vr(a,2)}, {vr(a+2,2)}"); p(f"v_pk_add_f32 {vr(a+4,2)}, {vr(a+4,2)}, {vr(a+6,2)}"); p(f"v_pk_add_f32 {vr(a,2)}, {vr(a,2)}, {vr(a+4,2)}")
            ln_scalars(p,R,a,a+1,S+2*mb)
        p("s_waitcnt lgkmcnt(0)")
        stamp(p,"e3_b8")
        def gb(mb,nb):
            def f(p):
                ln_gelu_block(p,G.A(mb,nb),cs0 if nb==0 else cs1,S+2*mb,T,KC,pk); stamp(p,f"e3_blk{2*mb+nb}")
            return f
        blocks=[(gb(mb,nb),'row',st_fn(mb,nb)) for mb in range(2) for nb in range(2)]
    else:
        p("s_barrier")
        blocks=[((lambda p,mb=mb,nb=nb: pack16(p,pk,G.A(mb,nb))),'row',st_fn(mb,nb)) for mb in range(2) for nb in range(2)]
    block_pipeline(p,R,X,blocks,pk,rb,tag='p3' if kind=='W3' else 'wo')
    R.release(m0)

def compute_p4(p,R,G,X,x1keep):
    p.comment("==== P4 compute")
    m0=R.mark()
    G.setup(p,R); X.setup(p,R)
    vo=R.alloc(1); ar=R.alloc(8,4); h2=R.alloc(8,4); pk=R.alloc(8,2); fa=R.alloc(8,2); fb=R.alloc(8,2); fc=R.alloc(8,2); gg=R.alloc(2,2); vg=R.alloc(1)
    rowmajor_voff(p,R,vo,1024)
    tile64_soff(p,C_K)
    p(f"v_lshrrev_b32 {v(vg)}, 2, v0"); p(f"v_lshlrev_b32 {v(vg)}, 2, {v(vg)}")
    p(f"s_mov_b32 {s(C_K+1)}, 0x7ff")
    poll_own(p,R,"p4",2,C_K+1,only_wave=0)
    stamp(p,"p4_flags")
    p("s_barrier")
    p(f"s_lshl_b32 {s(S_T0)}, {s(S_R64)}, 1"); p(f"s_add_u32 {s(S_T0)}, {s(S_T0)}, {s(S_WR)}"); p(f"s_lshl_b32 {s(S_T0)}, {s(S_T0)}, 7")
    p(f"s_add_u32 {s(S_T0)}, {s(S_T0)}, {G_OFF:#x}")
    p(f"buffer_load_dword {v(gg)}, {v(vg)}, {srd(SRD_WS)}, {s(S_T0)} offen sc1")
    p(f"buffer_load_dword {v(gg+1)}, {v(vg)}, {srd(SRD_WS)}, {s(S_T0)} offen offset:64 sc1")
    def a_loads(p):
        p(f"s_mov_b32 {s(C_K+1)}, 0x800")
        poll_own(p,R,"p4a",2,C_K+1)
        p(f"s_add_u32 {s(S_T0)}, {s(C_K)}, {A_OFF:#x}")
        p(f"buffer_load_dwordx4 {vr(ar,4)}, {v(vo)}, {srd(SRD_WS)}, {s(S_T0)} offen sc1")
        p(f"s_add_u32 {s(S_T0)}, {s(S_T0)}, {16*1024}")
        p(f"buffer_load_dwordx4 {vr(ar+4,4)}, {v(vo)}, {srd(SRD_WS)}, {s(S_T0)} offen sc1")
    G.main(p,[8]*11,[SA[g%4] for g in range(11)],[SB[g%4] for g in range(11)],slab_hook=lambda sl: a_loads(p) if sl==8 else None,ph='m4')
    stamp(p,"p4_mend")
    q=LgkQ(p)
    pack16(p,pk,G.acc); X.writes(q,pk,0); X.reads(q,h2,0,'r')
    set_srd(p,SRD_T,S_OUT,0x200000)
    p("s_waitcnt vmcnt(0) lgkmcnt(0)")
    for t in range(2):
        unpack8(p,fa,x1keep+4*t); unpack8(p,fb,h2+4*t); unpack8(p,fc,ar+4*t)
        for k in range(0,8,2): p(f"v_pk_add_f32 {vr(fa+k,2)}, {vr(fa+k,2)}, {vr(fb+k,2)}")
        for k in range(4): p(f"v_cvt_pk_bf16_f32 {v(pk+k)}, {v(fa+2*k)}, {v(fa+2*k+1)}")
        unpack8(p,fa,pk)
        for k in range(0,8,2): p(f"v_pk_add_f32 {vr(fc+k,2)}, {vr(fc+k,2)}, {vr(fa+k,2)} neg_lo:[0,1] neg_hi:[0,1]")
        sel = "op_sel:[0,0,0] op_sel_hi:[1,0,1]" if t==0 else "op_sel:[0,1,0] op_sel_hi:[1,1,1]"
        for k in range(0,8,2): p(f"v_pk_fma_f32 {vr(fa+k,2)}, {vr(fc+k,2)}, {vr(gg,2)}, {vr(fa+k,2)} {sel}")
        for k in range(4): p(f"v_cvt_pk_bf16_f32 {v(h2+4*t+k)}, {v(fa+2*k)}, {v(fa+2*k+1)}")
        if t: p(f"s_add_u32 {s(C_K)}, {s(C_K)}, {16*1024}")
        p(f"buffer_store_dwordx4 {vr(h2+4*t,4)}, {v(vo)}, {srd(SRD_T)}, {s(C_K)} offen")
    R.release(m0)
```

```python
import sys
from phases import *
from attn import *
KNAME="gated_mix__linear_kernel_hedgehog__mixer_s_mlp__prompt_kernel"
SHIFTS=[1,-1,2,-2]

def entry(p):
    p("s_cmp_ge_u32 s2, 256")
    p("s_cbranch_scc1 L_end")
    p("s_load_dwordx16 s[8:23], s[0:1], 0")
    p("s_load_dwordx8 s[24:31], s[0:1], 64")
    p("s_load_dwordx2 s[32:33], s[0:1], 96")
    p("v_lshrrev_b32 v1, 6, v0")
    p("v_and_b32 v0, 63, v0")
    p(f"v_readfirstlane_b32 {s(S_WAVE)}, v1")
    p(f"s_and_b32 {s(S_X)}, s2, 7")
    p(f"s_lshr_b32 {s(S_J)}, s2, 3")
    p(f"s_and_b32 {s(S_T0)}, {s(S_X)}, 1")
    p(f"s_lshl_b32 {s(S_T0)}, {s(S_T0)}, 3")
    p(f"s_and_b32 {s(S_T0+1)}, {s(S_J)}, 7")
    p(f"s_add_u32 {s(S_RT)}, {s(S_T0)}, {s(S_T0+1)}")
    p(f"s_lshr_b32 {s(S_T0)}, {s(S_X)}, 1")
    p(f"s_lshl_b32 {s(S_T0)}, {s(S_T0)}, 2")
    p(f"s_lshr_b32 {s(S_T0+2)}, {s(S_J)}, 3")
    p(f"s_add_u32 {s(S_CT)}, {s(S_T0)}, {s(S_T0+2)}")
    p(f"s_lshl_b32 {s(S_T0+2)}, {s(S_T0+2)}, 1")
    p(f"s_add_u32 {s(S_ROT)}, {s(S_T0+1)}, {s(S_T0+2)}")
    p(f"s_and_b32 {s(S_ROT)}, {s(S_ROT)}, 7")
    p(f"s_and_b32 {s(S_WC)}, {s(S_WAVE)}, 1")
    p(f"s_bfe_u32 {s(S_WR)}, {s(S_WAVE)}, 0x10001")
    p(f"s_and_b32 {s(S_W)}, {s(S_WAVE)}, 3")
    p(f"s_cmp_lt_u32 {s(S_WAVE)}, 4")
    p("s_cbranch_scc1 L_compute")

def epoch_load(p):
    set_srd(p,SRD_WS,S_WS,WS_SIZE)
    p(f"s_add_u32 {s(S_T0)}, {s(S_WS)}, {EPOCH_OFF:#x}")
    p(f"s_addc_u32 {s(S_T0+1)}, {s(S_WS+1)}, 0")
    p(f"s_load_dword {s(S_TAG)}, {sr(S_T0,2)}, 0")
def epoch_hash(p):
    p(f"s_mul_i32 {s(S_TAG)}, {s(S_TAG)}, 0x9e3779b1")
    p(f"s_add_u32 {s(S_TAG)}, {s(S_TAG)}, 0x7f4a7c15")

def rot3(p,i,dst):
    p(f"s_add_u32 {s(dst)}, {s(S_RT)}, {i}"); p(f"s_and_b32 {s(dst)}, {s(dst)}, 7")

def helper_program(progs,RH,stop_after):
    p=Prog("h1")
    if int(os.environ.get("PRIO","1"))==2: p("s_setprio 3")
    vA=RH.alloc(4); vB=RH.alloc(4); vW=RH.alloc(4); vAh=RH.alloc(16); vl=RH.alloc(1); PA=RH.alloc(1); dpf=RH.alloc(4,4)
    p(f"v_mov_b32 {v(PA)}, 0")
    p(f"s_lshl_b32 {s(K_A)}, {s(S_W)}, 12"); p(f"s_lshl_b32 {s(K_B)}, {s(S_W)}, 11")
    a128_voffs(p,RH,vA)
    p(f"s_and_b32 {s(S_T0+3)}, {s(S_CT)}, 7"); p(f"s_lshl_b32 {s(S_T0+3)}, {s(S_T0+3)}, 7")
    p(f"s_cmp_lt_u32 {s(S_CT)}, 8")
    p(f"s_cselect_b32 {s(S_T0+2)}, 1024, 0"); p(f"s_add_u32 {s(S_T0+2)}, {s(S_T0+2)}, {s(S_T0+3)}")
    p(f"s_cmp_lt_u32 {s(S_CT)}, 8")
    p(f"s_cselect_b32 {s(S_T0+4)}, 2048, 0"); p(f"s_add_u32 {s(S_T0+3)}, {s(S_T0+3)}, {s(S_T0+4)}")
    p(f"s_movk_i32 {s(S_T0)}, 3072")
    p(f"s_cmp_lt_u32 {s(S_CT)}, 8"); p(f"s_cselect_b32 {s(S_T0+1)}, {s(S_T0)}, 1024")
    b128_voffs(p,RH,vB,S_T0,S_T0+1,S_T0+2,S_T0+3)
    p(f"v_lshlrev_b32 {v(vl)}, 4, v0")
    p("s_waitcnt lgkmcnt(0)")
    stamp(p,"karg")
    set_srd(p,SRD_A,S_AX,0x200000)
    set_srd(p,SRD_B0,S_WQKV,0x180000)
    p(f"s_cmp_lt_u32 {s(S_CT)}, 8")
    p(f"s_cselect_b32 {s(SRD_B1)}, {s(S_WQKV)}, {s(S_W1)}"); p(f"s_cselect_b32 {s(SRD_B1+1)}, {s(S_WQKV+1)}, {s(S_W1+1)}")
    p(f"s_mov_b32 {s(S_T0)}, 0x180000"); p(f"s_cselect_b32 {s(SRD_B1+2)}, {s(S_T0)}, 0x80000"); p(f"s_mov_b32 {s(SRD_B1+3)}, 0x20000")
    vq=VmQ(p)
    def issue1(pp,vq,i):
        kk_of(pp,i,S_T0); pp(f"s_lshl_b32 {s(S_T0+3)}, {s(S_T0)}, 7")
        vq.add(('st',i),dmaA128(pp,vA,s(S_T0+3),SA[i%4])); vq.add(('st',i),dmaB128(pp,vB,S_T0,SB[i%4]))
    stamp(p,"h_dma0")
    issue1(p,vq,0)
    p(f"s_cmp_lt_u32 {s(S_CT)}, 8"); p("s_cbranch_scc0 L_h1_small_done")
    set_srd(p,SRD_T,S_WPHI,16384)
    p(f"s_lshl_b32 {s(S_T0)}, {s(S_CT)}, 11"); p(f"s_lshl_b32 {s(S_T0+1)}, {s(S_W)}, 10"); p(f"s_add_u32 {s(S_T0)}, {s(S_T0)}, {s(S_T0+1)}")
    p(f"s_add_u32 m0, {s(S_T0+1)}, {L_WPHI}")
    p(f"s_cmp_lt_u32 {s(S_W)}, 2"); p("s_cbranch_scc0 L_h1_small_done")
    p(f"buffer_load_dwordx4 {v(vl)}, {srd(SRD_T)}, {s(S_T0)} offen lds")
    p.label("L_h1_small_done")
    epoch_load(p)
    progs.append(p)
    def p1_loop(name):
        pp=Prog(name); m=RH.mark()
        q=VmQ(pp); q.add(('st',0),8)
        issue1(pp,q,1)
        pp("s_waitcnt lgkmcnt(0)"); epoch_hash(pp)
        vf=RH.alloc(1); df=RH.alloc(1)
        def post(i):
            if i==0 and stop_after>=2:
                p24_ids(pp); b64_voffs(pp,RH,vW)
            if i==2 and WPF:
                pp(f"s_lshl_b32 {s(S_T0)}, s2, 2"); pp(f"s_add_u32 {s(S_T0)}, {s(S_T0)}, {s(S_W)}")
                for k,(ptr,size) in enumerate(((S_W2,0x80000),(S_WO,0x80000),(S_W3,0x158000),(S_W4,0x158000))):
                    set_srd(pp,SRD_T,ptr,size)
                    pp(f"s_lshl_b32 {s(S_T0+1)}, {s(S_T0)}, 10")
                    pp(f"buffer_load_dwordx4 {vr(dpf,4)}, {v(vl)}, {srd(SRD_T)}, {s(S_T0+1)} offen"); q.add('pf')
                    if size>0x100000:
                        pp(f"s_add_u32 {s(S_T0+1)}, {s(S_T0+1)}, 0x100000")
                        pp(f"buffer_load_dwordx4 {vr(dpf,4)}, {v(vl)}, {srd(SRD_T)}, {s(S_T0+1)} offen"); q.add('pf')
            if i==5:
                pp(f"v_and_b32 {v(vf)}, 7, v0"); pp(f"v_lshlrev_b32 {v(vf)}, 2, {v(vf)}")
                pp(f"s_lshl_b32 {s(S_T0)}, s2, 7"); pp(f"s_add_u32 {s(K_O)}, {s(S_T0)}, {FL(4):#x}")
                pp(f"buffer_load_dword {v(df)}, {v(vf)}, {srd(SRD_WS)}, {s(K_O)} offen sc1"); q.add('xf')
            if i>=5 and stop_after>=2:
                if i==5: set_srd(pp,SRD_T,S_W2,0x80000)
                pp(f"s_mov_b32 {s(S_T0)}, {(i-5)<<17:#x}")
                q.add('w2',dma64(pp,vW,SRD_T,s(S_T0),SB[i-5]))
        for i in range(8):
            q.need(('st',i))
            if i==0: stamp(pp,"h_w0")
            if i==7:
                q.need('xf')
                pp(f"s_cmp_lt_u32 {s(S_CT)}, 8"); pp("s_cbranch_scc1 L_h1_noxs")
                pp(f"s_cmp_lg_u32 {s(S_W)}, 0"); pp("s_cbranch_scc1 L_h1_noxs")
                pp(f"s_mov_b32 {s(S_T0+1)}, 0x40000")
                pp.label("L_h1_xspoll")
                pp(f"v_cmp_ne_u32 vcc, {s(S_TAG)}, {v(df)}")
                pp(f"s_cmp_eq_u64 vcc, 0"); pp("s_cbranch_scc1 L_h1_xsok")
                pp(f"buffer_load_dword {v(df)}, {v(vf)}, {srd(SRD_WS)}, {s(K_O)} offen sc1")
                pp("s_waitcnt vmcnt(0)")
                pp(f"s_sub_u32 {s(S_T0+1)}, {s(S_T0+1)}, 1"); pp(f"s_cmp_lg_u32 {s(S_T0+1)}, 0"); pp("s_cbranch_scc1 L_h1_xspoll")
                pp.label("L_h1_xsok")
                pp(f"s_lshl_b32 {s(S_T0)}, {s(S_RT)}, 10"); pp(f"s_add_u32 {s(S_T0)}, {s(S_T0)}, {ST1_OFF:#x}")
                pp(f"s_mov_b32 m0, {L_STATS}")
                pp(f"buffer_load_dwordx4 {v(vl)}, {srd(SRD_WS)}, {s(S_T0)} offen sc1 lds")
                pp.label("L_h1_noxs")
            pp("s_barrier")
            if i+2<8: issue1(pp,q,i+2)
            post(i)
        pp("s_waitcnt vmcnt(4)")
        RH.release(m)
        return pp
    pa=p1_loop("h1_loop"); progs.append(pa)
    p=Prog("h2"); p.label("L_h1_done")
    stamp(p,"hm1_end")
    p("s_barrier")
    if stop_after<2:
        return p
    p(f"s_mov_b32 {s(S_T0)}, {3<<17:#x}")
    dma64(p,vW,SRD_T,s(S_T0),SB[3])
    for g_ in range(4): a64_voffs(p,RH,vAh+4*g_,1024,SHIFTS[g_],check=True)
    if stop_after>=3:
        p(f"s_cmp_ge_u32 {s(S_CT)}, 11")
        p(f"s_cselect_b32 {s(SRD_B0)}, {s(S_WO)}, {s(S_W3)}"); p(f"s_cselect_b32 {s(SRD_B0+1)}, {s(S_WO+1)}, {s(S_W3+1)}")
        p(f"s_mov_b32 {s(S_T0)}, 0x158000"); p(f"s_cselect_b32 {s(SRD_B0+2)}, 0x80000, {s(S_T0)}"); p(f"s_mov_b32 {s(SRD_B0+3)}, 0x20000")
        for k in range(4): p(f"s_mov_b32 {s(SRD_B1+k)}, {s(SRD_B0+k)}")
        p(f"s_movk_i32 {s(S_T0+1)}, 2752"); p(f"s_cselect_b32 {s(S_T0)}, 1024, {s(S_T0+1)}")
        p(f"s_sub_u32 {s(S_T0+2)}, {s(S_CT)}, 11"); p(f"s_cselect_b32 {s(S_T0+2)}, {s(S_CT)}, {s(S_T0+2)}")
        p(f"s_lshl_b32 {s(S_T0+2)}, {s(S_T0+2)}, 8"); p(f"s_add_u32 {s(S_T0+3)}, {s(S_T0+2)}, 128")
        b128_voffs(p,RH,vB,S_T0,S_T0,S_T0+2,S_T0+3)
    att_ids(p); push_o(p,RH,PA)
    p(f"s_cmp_lg_u32 {s(S_W)}, 0"); p("s_cbranch_scc1 L_h2_noatt0")
    set_srd(p,SRD_T,S_WPHI,16384)
    p(f"s_lshr_b32 {s(S_T0)}, {s(S_HD)}, 1"); p(f"s_lshl_b32 {s(S_T0)}, {s(S_T0)}, 10")
    p(f"s_mov_b32 m0, {L_WF}")
    p(f"buffer_load_dwordx4 {v(vl)}, {srd(SRD_T)}, {s(S_T0)} offen lds")
    p.label("L_h2_noatt0")
    set_srd(p,SRD_A,S_WS,0x200000,H_OFF)
    p("s_waitcnt vmcnt(0)")
    vkf=RH.alloc(1); dkf=RH.alloc(1)
    m0=RH.mark()
    RA=Regs(m0,m0+72); RB=Regs(m0+72,RH.limit)
    p(f"v_and_b32 {v(vkf)}, 31, v0"); p(f"v_lshlrev_b32 {v(vkf)}, 2, {v(vkf)}")
    p(f"s_lshl_b32 {s(S_T0)}, s2, 7"); p(f"s_add_u32 {s(K_PB0+2)}, {s(S_T0)}, {FL(3):#x}")
    kr=kv_reduce(p,RA,vl); next(kr)
    ab=att_blocks(p,RB,S_WAVE); next(ab)
    p("s_barrier")
    q=VmQ(p)
    p(f"buffer_load_dword {v(dkf)}, {v(vkf)}, {srd(SRD_WS)}, {s(K_PB0+2)} offen sc1"); q.add('kf')
    def issue2(g):
        p(f"s_mov_b32 {s(S_T0)}, {g*256}")
        q.add(('st',g),dma64(p,vAh+4*g,SRD_A,s(S_T0),SA[g],ASC))
    for g_ in range(3): issue2(g_)
    q.need(('st',0)); stamp(p,"p2_w0")
    p("s_barrier")
    issue2(3)
    p(f"s_mov_b32 {s(S_T0+1)}, 0x40000")
    p.label("L_kvpoll")
    p(f"v_cmp_ne_u32 vcc, {s(S_TAG)}, {v(dkf)}")
    p(f"s_and_b32 {s(S_T0+2)}, vcc_lo, 0x3ffff"); p("s_cbranch_scc0 L_kvpoll_ok")
    p(f"buffer_load_dword {v(dkf)}, {v(vkf)}, {srd(SRD_WS)}, {s(K_PB0+2)} offen sc1")
    p("s_waitcnt vmcnt(0)")
    p(f"s_sub_u32 {s(S_T0+1)}, {s(S_T0+1)}, 1"); p(f"s_cmp_lg_u32 {s(S_T0+1)}, 0"); p("s_cbranch_scc1 L_kvpoll")
    p.label("L_kvpoll_ok")
    stamp(p,"p2_kvflags")
    next(kr); q.add('part',8)
    next(ab); q.add('q')
    q.need(('st',1)); p("s_barrier")
    lds_signal(p,RH,const=C_KVF)
    for g_ in range(2,4):
        q.need(('st',g_)); p("s_barrier")
    p("s_barrier")
    stamp(p,"p2_G")
    def pfB(i):
        if stop_after<3: return
        u=uid()
        p(f"s_cmp_eq_u32 {s(S_CT)}, 15"); p(f"s_cbranch_scc1 L_pfB{u}")
        rot3(p,i,S_T0); dmaB128(p,vB,S_T0,SB[i])
        p.label(f"L_pfB{u}")
    p("s_waitcnt vmcnt(0)")
    pfB(0); pfB(1)
    try: kr.send("lgkmcnt(0)")
    except StopIteration: pass
    stamp(p,"p2_red")
    pfB(2); pfB(3)
    RP3=m0
    if stop_after>=3 and RPF3:
        p(f"s_cmp_eq_u32 {s(S_CT)}, 15"); p("s_cbranch_scc1 L_rp3_skip")
        for j in range(4,8):
            rot3(p,j,S_T0)
            p(f"s_mul_i32 {s(S_T0+1)}, {s(S_T0)}, {s(K_PB0)}"); p(f"s_mul_i32 {s(S_T0+2)}, {s(S_T0)}, {s(K_PB1)}")
            r=(RP3+3)//4*4+16*(j-4)
            p(f"buffer_load_dwordx4 {vr(r,4)}, {v(vB)}, {srd(SRD_B0)}, {s(S_T0+1)} offen")
            p(f"buffer_load_dwordx4 {vr(r+4,4)}, {v(vB+1)}, {srd(SRD_B0)}, {s(S_T0+1)} offen offset:1024")
            p(f"buffer_load_dwordx4 {vr(r+8,4)}, {v(vB+2)}, {srd(SRD_B1)}, {s(S_T0+2)} offen")
            p(f"buffer_load_dwordx4 {vr(r+12,4)}, {v(vB+3)}, {srd(SRD_B1)}, {s(S_T0+2)} offen offset:1024")
        p.label("L_rp3_skip")
    RP3a=(RP3+3)//4*4
    RP4=RP3a+64
    RH.next=RP4+16*7; RH.hi=max(RH.hi,RH.next)
    ab.send("vmcnt(63)")
    next(ab)
    stamp(p,"p2_att")
    RH.hi=max(RH.hi,RA.hi,RB.hi)
    o_arrive(p,RH,PA,"o_h")
    if stop_after<3: return p
    progs.append(p)
    p=Prog("h3_dispatch")
    p(f"s_cmp_eq_u32 {s(S_CT)}, 15"); p("s_cbranch_scc1 L_h3_idle")
    p(f"s_cmp_ge_u32 {s(S_CT)}, 11"); p("s_cbranch_scc1 L_h3_wo")
    progs.append(p)
    def rot4(pp,i,dst):
        pp(f"s_add_u32 {s(dst)}, {s(S_ROT)}, {i}"); pp(f"s_cmp_ge_u32 {s(dst)}, 11"); pp(f"s_cselect_b32 {s(S_T0+7)}, 11, 0"); pp(f"s_sub_u32 {s(dst)}, {s(dst)}, {s(S_T0+7)}")
    def w4dma(pp,i):
        rot4(pp,i,S_T0); pp(f"s_lshl_b32 {s(S_T0)}, {s(S_T0)}, 17"); return dma64(pp,vW,SRD_T,s(S_T0),SB[i%4])
    def w4reg(pp,g_):
        rot4(pp,g_,S_T0); pp(f"s_lshl_b32 {s(S_T0)}, {s(S_T0)}, 17")
        for q_ in range(4):
            off=f" offset:{q_*1024}" if q_ else ""
            pp(f"buffer_load_dwordx4 {vr(RP4+16*(g_-4)+4*q_,4)}, {v(vW+q_)}, {srd(SRD_T)}, {s(S_T0)} offen{off}")
    def set_rot4(pp):
        pp(f"s_mul_i32 {s(S_ROT)}, {s(S_C8)}, {ROT4}"); pp(f"s_lshr_b32 {s(S_ROT)}, {s(S_ROT)}, 3")
    def p3_loop(name,kind):
        pp=Prog(name); m=RH.mark()
        rp=RP3a
        if RPF3:
            vbw=RH.alloc(1)
            pp(f"v_add_u32 {v(vbw)}, {s(K_B)}, {v(vl)}"); pp(f"v_add_u32 {v(vbw)}, 0x10000, {v(vbw)}")
        if kind=='W3':
            set_srd(pp,SRD_A,S_WS,0x200000,X1_OFF); sh=7
            sd=RH.alloc(16,4); va=RH.alloc(1)
            pp(f"v_lshrrev_b32 {v(va)}, 4, v0"); pp(f"v_lshlrev_b32 {v(va)}, 10, {v(va)}")
            pp(f"v_and_b32 {v(sd)}, 15, v0"); pp(f"v_lshlrev_b32 {v(sd)}, 4, {v(sd)}"); pp(f"v_add_u32 {v(va)}, {v(va)}, {v(sd)}")
            pp(f"s_lshl_b32 {s(S_T0)}, {s(S_W)}, 8"); pp(f"s_add_u32 {s(S_T0)}, {s(S_T0)}, {L_ST3}"); pp(f"v_add_u32 {v(va)}, {s(S_T0)}, {v(va)}")
        else:
            sh=18
            set_srd(pp,SRD_A,S_WS,0x201000,O_OFF-4096)
            t0=RH.alloc(); t1=RH.alloc(); t2=RH.alloc(); t3=RH.alloc()
            pp(f"v_lshrrev_b32 {v(t0)}, 3, v0")
            pp(f"s_lshl_b32 {s(S_T0)}, {s(S_RT)}, 2"); pp(f"s_add_u32 {s(S_T0)}, {s(S_T0)}, {s(S_W)}"); pp(f"s_lshl_b32 {s(S_T0)}, {s(S_T0)}, 5")
            pp(f"v_add_u32 {v(t0)}, {s(S_T0)}, {v(t0)}"); pp(f"v_lshlrev_b32 {v(t0)}, 5, {v(t0)}")
            pp(f"v_lshrrev_b32 {v(t2)}, 4, v0"); pp(f"v_and_b32 {v(t1)}, 7, v0")
            for qq in range(4):
                if qq&1: pp(f"v_or_b32 {v(t3)}, 4, {v(t2)}")
                else: pp(f"v_mov_b32 {v(t3)}, {v(t2)}")
                pp(f"v_xor_b32 {v(t3)}, {v(t3)}, {v(t1)}")
                pp(f"v_lshrrev_b32 {v(vA+qq)}, 1, {v(t3)}"); pp(f"v_lshlrev_b32 {v(vA+qq)}, 16, {v(vA+qq)}")
                pp(f"v_and_b32 {v(t3)}, 1, {v(t3)}"); pp(f"v_lshlrev_b32 {v(t3)}, 4, {v(t3)}")
                pp(f"v_add_u32 {v(vA+qq)}, {v(vA+qq)}, {v(t3)}"); pp(f"v_add_u32 {v(vA+qq)}, {v(vA+qq)}, {v(t0)}")
                pp(f"v_add_u32 {v(vA+qq)}, {4096+qq*256-qq*1024}, {v(vA+qq)}")
        vt3=RH.alloc(2)
        if TOUCH and kind=='W3':
            pp(f"v_lshrrev_b32 {v(vt3)}, 3, v0"); pp(f"v_and_b32 {v(vt3+1)}, 7, v0"); pp(f"v_lshlrev_b32 {v(vt3+1)}, 7, {v(vt3+1)}")
            pp(f"s_lshl_b32 {s(S_T0)}, {s(S_RT)}, 7"); pp(f"s_lshr_b32 {s(S_T0+1)}, {s(S_J)}, 3"); pp(f"s_lshl_b32 {s(S_T0+1)}, {s(S_T0+1)}, 5"); pp(f"s_add_u32 {s(S_T0)}, {s(S_T0)}, {s(S_T0+1)}")
            pp(f"s_lshl_b32 {s(S_T0+1)}, {s(S_W)}, 3"); pp(f"s_add_u32 {s(S_T0)}, {s(S_T0)}, {s(S_T0+1)}")
            pp(f"v_add_u32 {v(vt3)}, {s(S_T0)}, {v(vt3)}"); pp(f"v_lshlrev_b32 {v(vt3)}, 10, {v(vt3)}"); pp(f"v_add_u32 {v(vt3)}, {v(vt3)}, {v(vt3+1)}")
        pp("s_barrier")
        q=VmQ(pp)
        if TOUCH and kind=='W3':
            pp(f"buffer_load_dword {v(vt3+1)}, {v(vt3)}, {srd(SRD_A)}, 0 offen{ASC}"); q.add('touch')
        def issue3(i):
            rot3(pp,i,S_T0); pp(f"s_lshl_b32 {s(S_T0+3)}, {s(S_T0)}, {sh}")
            q.add(('st',i),dmaA128(pp,vA,s(S_T0+3),SA[i%4],ASC))
            if i>=4:
                if RPF3:
                    r=rp+16*(i-4); o=SB[i%4]-65536
                    pp(f"ds_write_b128 {v(vbw)}, {vr(r,4)} offset:{o}"); pp(f"ds_write_b128 {v(vbw)}, {vr(r+4,4)} offset:{o+1024}")
                    pp(f"ds_write_b128 {v(vbw)}, {vr(r+8,4)} offset:{o+8192}"); pp(f"ds_write_b128 {v(vbw)}, {vr(r+12,4)} offset:{o+8192+1024}")
                else: q.add(('st',i),dmaB128(pp,vB,S_T0,SB[i%4]))
        D3=int(os.environ.get('D3','3'))
        for i_ in range(D3): issue3(i_)
        if kind=='W3':
            pp(f"s_lshl_b32 {s(S_T0)}, {s(S_RT)}, 2"); pp(f"s_add_u32 {s(S_T0)}, {s(S_T0)}, {s(S_W)}"); pp(f"s_lshl_b32 {s(S_T0)}, {s(S_T0)}, 12")
            pp(f"s_add_u32 {s(S_T0)}, {s(S_T0)}, {ST_OFF:#x}")
            for j in range(4):
                pp(f"buffer_load_dwordx4 {vr(sd+4*j,4)}, {v(vl)}, {srd(SRD_WS)}, {s(S_T0)} offen offset:{j*1024} sc1"); q.add('stat')
        for i in range(8):
            q.need(('st',i))
            if RPF3 and i>=2: pp("s_waitcnt lgkmcnt(0)")
            if i==0: stamp(pp,"p3_w0")
            pp("s_barrier")
            if i+D3<8: issue3(i+D3)
            if i>=5 and stop_after>=4:
                if i==5: set_srd(pp,SRD_T,S_W4,0x158000); set_rot4(pp)
                q.add('w4',w4dma(pp,i-5))
            if kind=='W3' and i==1:
                q.need('stat')
                for j in range(1,4):
                    for k in range(4): pp(f"v_add_f32 {v(sd+k)}, {v(sd+k)}, {v(sd+4*j+k)}")
                pp(f"ds_write_b128 {v(va)}, {vr(sd,4)}"); pp("s_waitcnt lgkmcnt(0)")
        RH.release(m)
        return pp
    pa=p3_loop("h3_w3",'W3'); pa("s_branch L_h3_done"); progs.append(pa)
    pb=p3_loop("h3_wo",'Wo'); pb.items.insert(0,('l',"L_h3_wo:")); progs.append(pb)
    p=Prog("h4"); p.label("L_h3_done")
    p("s_barrier")
    if stop_after<4:
        p.label("L_h3_idle"); return p
    w4dma(p,3)
    p("s_branch L_h4_go")
    p.label("L_h3_idle")
    set_srd(p,SRD_T,S_W4,0x158000); set_rot4(p)
    for g_ in range(4): w4dma(p,g_)
    p.label("L_h4_go")
    if RPF:
        vw4=RH.alloc(1)
        p(f"v_add_u32 {v(vw4)}, {s(K_A)}, {v(vl)}"); p(f"v_add_u32 {v(vw4)}, 0x10000, {v(vw4)}")
        for g_ in range(4,11):
            w4reg(p,g_)
            if g_%RP4STEP==RP4STEP-1: p("s_waitcnt vmcnt(0)")
    a64_voffs(p,RH,vAh,HID_PITCH)
    set_srd(p,SRD_A,S_WS,2048*HID_PITCH,HID_OFF)
    vt4=RH.alloc(2)
    if TOUCH:
        p(f"v_cmp_lt_u32 vcc, 21, v0"); p(f"v_cndmask_b32 {v(vt4)}, 0, 1, vcc")
        p(f"v_mul_u32_u24 {v(vt4+1)}, 22, {v(vt4)}"); p(f"v_sub_u32 {v(vt4+1)}, v0, {v(vt4+1)}"); p(f"v_lshlrev_b32 {v(vt4+1)}, 7, {v(vt4+1)}")
        p(f"s_lshl_b32 {s(S_T0)}, {s(S_R64)}, 6"); p(f"s_lshl_b32 {s(S_T0+1)}, {s(S_C8)}, 3"); p(f"s_add_u32 {s(S_T0)}, {s(S_T0)}, {s(S_T0+1)}")
        p(f"s_lshl_b32 {s(S_T0+1)}, {s(S_W)}, 1"); p(f"s_add_u32 {s(S_T0)}, {s(S_T0)}, {s(S_T0+1)}")
        p(f"v_add_u32 {v(vt4)}, {s(S_T0)}, {v(vt4)}"); p(f"v_mul_u32_u24 {v(vt4)}, {HID_PITCH}, {v(vt4)}"); p(f"v_add_u32 {v(vt4)}, {v(vt4)}, {v(vt4+1)}")
        p(f"v_mov_b32 {v(vt4+1)}, 0x80000000"); p(f"v_cmp_lt_u32 vcc, 43, v0"); p(f"v_cndmask_b32 {v(vt4)}, {v(vt4)}, {v(vt4+1)}, vcc")
    if RPF: p("s_waitcnt vmcnt(0)")
    p("s_barrier")
    q=VmQ(p)
    if TOUCH:
        p(f"buffer_load_dword {v(vt4+1)}, {v(vt4)}, {srd(SRD_A)}, 0 offen{ASC}"); q.add('touch')
    def issue4(g):
        rot4(p,g,S_T0); p(f"s_lshl_b32 {s(S_T0)}, {s(S_T0)}, 8")
        q.add(('st',g),dma64(p,vAh,SRD_A,s(S_T0),SA[g%4],ASC))
        if g>=4:
            if RPF:
                for q_ in range(4): p(f"ds_write_b128 {v(vw4)}, {vr(RP4+16*(g-4)+4*q_,4)} offset:{SB[g%4]-65536+q_*1024}")
            else:
                q.add(('st',g),w4dma(p,g))
    D4=int(os.environ.get('D4','3'))
    for g_ in range(D4): issue4(g_)
    for i in range(11):
        q.need(('st',i))
        if RPF and i>=2: p("s_waitcnt lgkmcnt(0)")
        if i==0: stamp(p,"p4_w0")
        stamp(p,f"h4_w{i}")
        p("s_barrier")
        stamp(p,f"h4_b{i}")
        if i+D4<11: issue4(i+D4)
        stamp(p,f"h4_i{i}")
    return p

ASC=os.environ.get("ASC"," sc1")
TOUCH=int(os.environ.get("TOUCH","1"))
WPF=int(os.environ.get("WPF","1"))
RPF=int(os.environ.get("RPF","1"))
RPF3=int(os.environ.get("RPF3","1"))
ROT4=int(os.environ.get("ROT4","11"))
RP4STEP=int(os.environ.get("RP4STEP","1"))

def build(stop_after=4):
    progs=[]; lim=250 if STAMP else 256
    pe=Prog("entry")
    if STAMP:
        for k in range(10): pe(f"s_mov_b32 s{80+2*k}, 0")
    stamp(pe,0); stamp(pe,1); entry(pe); progs.append(pe)
    RH=Regs(2,lim)
    ph=helper_program(progs,RH,stop_after)
    stamp_dump(ph); ph("s_branch L_end"); progs.append(ph)
    R=Regs(2,lim)
    x1keep=R.alloc(8,4); PA=R.alloc(1); PAo=R.alloc(1); mph=R.mark()
    G=G128(R); X=XP(R,quad=True)
    pc=Prog("c_dispatch"); pc.label("L_compute")
    if int(os.environ.get("PRIO","1"))==1: pc("s_setprio 3")
    zero_counters(pc,R)
    pc("s_waitcnt lgkmcnt(0)"); epoch_load(pc)
    pc(f"s_cmp_ge_u32 {s(S_CT)}, 8"); pc("s_cbranch_scc1 L_c1_qw")
    progs.append(pc)
    class Hash:  pass
    def with_hash(fn,p,*a):
        n0=len(p.items); fn(p,*a)
        for i in range(n0,len(p.items)):
            k,it=p.items[i]
            if k=='c' and it==";EPOCH":
                tmp=Prog("t"); epoch_hash(tmp); p.items[i+1:i+1]=tmp.items; return
        raise Exception("no epoch marker found")
    pk=Prog("c1_kv"); with_hash(compute_p1_KV,pk,R,G,X,PA); pk("s_branch L_c1_done"); progs.append(pk)
    pq=Prog("c1_qw"); pq.label("L_c1_qw"); with_hash(compute_p1_QW,pq,R,G,X,PA); progs.append(pq)
    pd=Prog("c1_done"); pd.label("L_c1_done")
    stamp(pd,"e1_epi"); arrive_push(pd,R,C_P1,4,PA,"p1",started=True); stamp(pd,"e1_push")
    def finish(p): stamp_dump(p); p("s_branch L_end")
    if stop_after==1: finish(pd)
    progs.append(pd); R.release(mph)
    if stop_after>=2:
        G6=G64(R); X6=XP(R)
        p2=Prog("c2"); compute_p2(p2,R,G6,X6,x1keep,PA,PAo)
        if stop_after==2: o_arrive(p2,R,PAo,"o_c2")
        if stop_after==2: finish(p2)
        progs.append(p2); R.release(mph)
    if stop_after>=3:
        G=G128(R); X=XP(R)
        p3=Prog("c3_dispatch")
        p3(f"s_cmp_eq_u32 {s(S_CT)}, 15"); p3("s_cbranch_scc1 L_c3_idle")
        p3(f"s_cmp_ge_u32 {s(S_CT)}, 11"); p3("s_cbranch_scc1 L_c3_wo")
        progs.append(p3)
        pa=Prog("c3_w3"); compute_p3(pa,R,G,X,'W3',PA,PAo); pa("s_branch L_c3_done"); progs.append(pa)
        pb=Prog("c3_wo"); pb.label("L_c3_wo"); compute_p3(pb,R,G,X,'Wo',PA,PAo); progs.append(pb)
        pz=Prog("c3_done"); pz.label("L_c3_done")
        stamp(pz,"e3_epi"); arrive_push(pz,R,C_P3,4,PA,"p3"); stamp(pz,"e3_push")
        pz("s_branch L_c4")
        pz.label("L_c3_idle")
        o_arrive(pz,R,PAo,"o_cidle")
        pz(f"s_cmp_lg_u32 {s(S_RT)}, 0"); pz("s_cbranch_scc1 L_c4")
        pz(f"s_cmp_lg_u32 {s(S_WAVE)}, 1"); pz("s_cbranch_scc1 L_c4")
        m=R.mark(); a=R.alloc(1); d=R.alloc(4,4)
        pz(f"v_lshlrev_b32 {v(a)}, 4, v0")
        pz(f"s_mov_b32 {s(S_T0)}, {STARTED:#x}"); pz(f"s_mov_b32 {s(S_T0+1)}, 0x40000")
        pz.label("L_ep_poll")
        pz(f"buffer_load_dwordx4 {vr(d,4)}, {v(a)}, {srd(SRD_WS)}, {s(S_T0)} offen sc1")
        pz("s_waitcnt vmcnt(0)")
        for k in range(4): pz(f"v_xor_b32 {v(d+k)}, {s(S_TAG)}, {v(d+k)}")
        pz(f"v_or_b32 {v(d)}, {v(d)}, {v(d+1)}"); pz(f"v_or_b32 {v(d+2)}, {v(d+2)}, {v(d+3)}"); pz(f"v_or_b32 {v(d)}, {v(d)}, {v(d+2)}")
        pz(f"v_cmp_ne_u32 vcc, 0, {v(d)}")
        pz(f"s_cmp_eq_u64 vcc, 0"); pz("s_cbranch_scc1 L_ep_go")
        pz(f"s_sub_u32 {s(S_T0+1)}, {s(S_T0+1)}, 1"); pz(f"s_cmp_lg_u32 {s(S_T0+1)}, 0"); pz("s_cbranch_scc1 L_ep_poll")
        pz("s_branch L_c4")
        pz.label("L_ep_go")
        pz(f"v_mov_b32 {v(a)}, 0"); pz(f"v_mov_b32 {v(d)}, {s(S_TAG)}"); pz(f"s_mov_b32 {s(S_T0)}, {EPOCH_OFF:#x}")
        pz("s_mov_b64 exec, 1")
        pz(f"buffer_store_dword {v(d)}, {v(a)}, {srd(SRD_WS)}, {s(S_T0)} offen sc1")
        pz("s_mov_b64 exec, -1")
        R.release(m)
        pz.label("L_c4")
        if stop_after==3: finish(pz)
        progs.append(pz); R.release(mph)
    if stop_after>=4:
        G6=G64(R); X6=XP(R)
        p4=Prog("c4"); compute_p4(p4,R,G6,X6,x1keep)
        stamp(p4,"end"); stamp_dump(p4)
        progs.append(p4)
    pend=Prog("end"); pend.label("L_end"); pend("s_endpgm"); progs.append(pend)
    vmax=max(R.hi,RH.hi)
    lines=[]; errs=[]
    for pr in progs:
        o,e=fix_hazards(pr); lines+=o; errs+=e
    if errs:
        for e in errs[:40]: print("ERR",e)
        raise SystemExit(1)
    return lines,vmax

def emit(path,lines,vmax,header_from="gated_mix__linear_kernel_hedgehog__mixer_s_mlp__prompt.s.ref"):
    hdr=[l for l in open(header_from).read().split("\n") if l.startswith(";") and "@launch" not in l and "Override launch" not in l and "grid=ceil" not in l]
    nv=256 if STAMP else (vmax+7)//8*8
    t="\n".join(hdr)+"\n"
    t+=f"; @launch grid=(256,1,1) block=(512,1,1) lds={LDS_SIZE}\n"
    t+='.amdgcn_target "amdgcn-amd-amdhsa--gfx950"\n.text\n'
    t+=f".globl {KNAME}\n.p2align 8\n.type {KNAME},@function\n{KNAME}:\n"
    t+="\n".join(lines)+"\n"
    t+=f""".section .rodata,"a"
.p2align 6
.amdhsa_kernel {KNAME}
  .amdhsa_next_free_vgpr {nv}
  .amdhsa_next_free_sgpr 100
  .amdhsa_accum_offset {nv}
  .amdhsa_group_segment_fixed_size 0
  .amdhsa_kernarg_size 104
  .amdhsa_user_sgpr_count 2
  .amdhsa_user_sgpr_kernarg_segment_ptr 1
  .amdhsa_system_sgpr_workgroup_id_x 1
  .amdhsa_float_denorm_mode_32 3
.end_amdhsa_kernel
"""
    open(path,"w").write(t)

if __name__=="__main__":
    lines,vmax=build(int(os.environ.get("STOP","4")))
    out=sys.argv[1] if len(sys.argv)>1 else "k.s"
    emit(out,lines,vmax)
    print("vgprs",vmax,"lines",len(lines))
```

```python
import sys
from phases import *
from attn import *
KNAME="gated_mix__linear_kernel_hedgehog__mixer_s_mlp__prompt_kernel"
SHIFTS=[1,-1,2,-2]

def entry(p):
    p("s_cmp_ge_u32 s2, 256")
    p("s_cbranch_scc1 L_end")
    p("s_load_dwordx16 s[8:23], s[0:1], 0")
    p("s_load_dwordx8 s[24:31], s[0:1], 64")
    p("s_load_dwordx2 s[32:33], s[0:1], 96")
    p("v_lshrrev_b32 v1, 6, v0")
    p("v_and_b32 v0, 63, v0")
    p(f"v_readfirstlane_b32 {s(S_WAVE)}, v1")
    p(f"s_and_b32 {s(S_X)}, s2, 7")
    p(f"s_lshr_b32 {s(S_J)}, s2, 3")
    p(f"s_and_b32 {s(S_T0)}, {s(S_X)}, 1")
    p(f"s_lshl_b32 {s(S_T0)}, {s(S_T0)}, 3")
    p(f"s_and_b32 {s(S_T0+1)}, {s(S_J)}, 7")
    p(f"s_add_u32 {s(S_RT)}, {s(S_T0)}, {s(S_T0+1)}")
    p(f"s_lshr_b32 {s(S_T0)}, {s(S_X)}, 1")
    p(f"s_lshl_b32 {s(S_T0)}, {s(S_T0)}, 2")
    p(f"s_lshr_b32 {s(S_T0+2)}, {s(S_J)}, 3")
    p(f"s_add_u32 {s(S_CT)}, {s(S_T0)}, {s(S_T0+2)}")
    p(f"s_lshl_b32 {s(S_T0+2)}, {s(S_T0+2)}, 1")
    p(f"s_add_u32 {s(S_ROT)}, {s(S_T0+1)}, {s(S_T0+2)}")
    p(f"s_and_b32 {s(S_ROT)}, {s(S_ROT)}, 7")
    p(f"s_and_b32 {s(S_WC)}, {s(S_WAVE)}, 1")
    p(f"s_bfe_u32 {s(S_WR)}, {s(S_WAVE)}, 0x10001")
    p(f"s_and_b32 {s(S_W)}, {s(S_WAVE)}, 3")
    p(f"s_cmp_lt_u32 {s(S_WAVE)}, 4")
    p("s_cbranch_scc1 L_compute")

def epoch_load(p):
    set_srd(p,SRD_WS,S_WS,WS_SIZE)
    p(f"s_add_u32 {s(S_T0)}, {s(S_WS)}, {EPOCH_OFF:#x}")
    p(f"s_addc_u32 {s(S_T0+1)}, {s(S_WS+1)}, 0")
    p(f"s_load_dword {s(S_TAG)}, {sr(S_T0,2)}, 0")
def epoch_hash(p):
    p(f"s_mul_i32 {s(S_TAG)}, {s(S_TAG)}, 0x9e3779b1")
    p(f"s_add_u32 {s(S_TAG)}, {s(S_TAG)}, 0x7f4a7c15")

def rot3(p,i,dst):
    p(f"s_add_u32 {s(dst)}, {s(S_RT)}, {i}"); p(f"s_and_b32 {s(dst)}, {s(dst)}, 7")

def helper_program(progs,RH,stop_after):
    p=Prog("h1")
    if int(os.environ.get("PRIO","1"))==2: p("s_setprio 3")
    vA=RH.alloc(4); vB=RH.alloc(4); vW=RH.alloc(4); vAh=RH.alloc(16); vl=RH.alloc(1); PA=RH.alloc(1); dpf=RH.alloc(4,4)
    p(f"v_mov_b32 {v(PA)}, 0")
    p(f"s_lshl_b32 {s(K_A)}, {s(S_W)}, 12"); p(f"s_lshl_b32 {s(K_B)}, {s(S_W)}, 11")
    a128_voffs(p,RH,vA)
    p(f"s_and_b32 {s(S_T0+3)}, {s(S_CT)}, 7"); p(f"s_lshl_b32 {s(S_T0+3)}, {s(S_T0+3)}, 7")
    p(f"s_cmp_lt_u32 {s(S_CT)}, 8")
    p(f"s_cselect_b32 {s(S_T0+2)}, 1024, 0"); p(f"s_add_u32 {s(S_T0+2)}, {s(S_T0+2)}, {s(S_T0+3)}")
    p(f"s_cmp_lt_u32 {s(S_CT)}, 8")
    p(f"s_cselect_b32 {s(S_T0+4)}, 2048, 0"); p(f"s_add_u32 {s(S_T0+3)}, {s(S_T0+3)}, {s(S_T0+4)}")
    p(f"s_movk_i32 {s(S_T0)}, 3072")
    p(f"s_cmp_lt_u32 {s(S_CT)}, 8"); p(f"s_cselect_b32 {s(S_T0+1)}, {s(S_T0)}, 1024")
    b128_voffs(p,RH,vB,S_T0,S_T0+1,S_T0+2,S_T0+3)
    p(f"v_lshlrev_b32 {v(vl)}, 4, v0")
    p("s_waitcnt lgkmcnt(0)")
    stamp(p,"karg")
    set_srd(p,SRD_A,S_AX,0x200000)
    set_srd(p,SRD_B0,S_WQKV,0x180000)
    p(f"s_cmp_lt_u32 {s(S_CT)}, 8")
    p(f"s_cselect_b32 {s(SRD_B1)}, {s(S_WQKV)}, {s(S_W1)}"); p(f"s_cselect_b32 {s(SRD_B1+1)}, {s(S_WQKV+1)}, {s(S_W1+1)}")
    p(f"s_mov_b32 {s(S_T0)}, 0x180000"); p(f"s_cselect_b32 {s(SRD_B1+2)}, {s(S_T0)}, 0x80000"); p(f"s_mov_b32 {s(SRD_B1+3)}, 0x20000")
    vq=VmQ(p)
    def issue1(pp,vq,i):
        kk_of(pp,i,S_T0); pp(f"s_lshl_b32 {s(S_T0+3)}, {s(S_T0)}, 7")
        vq.add(('st',i),dmaA128(pp,vA,s(S_T0+3),SA[i%4])); vq.add(('st',i),dmaB128(pp,vB,S_T0,SB[i%4]))
    stamp(p,"h_dma0")
    issue1(p,vq,0)
    p(f"s_cmp_lt_u32 {s(S_CT)}, 8"); p("s_cbranch_scc0 L_h1_small_done")
    set_srd(p,SRD_T,S_WPHI,16384)
    p(f"s_lshl_b32 {s(S_T0)}, {s(S_CT)}, 11"); p(f"s_lshl_b32 {s(S_T0+1)}, {s(S_W)}, 10"); p(f"s_add_u32 {s(S_T0)}, {s(S_T0)}, {s(S_T0+1)}")
    p(f"s_add_u32 m0, {s(S_T0+1)}, {L_WPHI}")
    p(f"s_cmp_lt_u32 {s(S_W)}, 2"); p("s_cbranch_scc0 L_h1_small_done")
    p(f"buffer_load_dwordx4 {v(vl)}, {srd(SRD_T)}, {s(S_T0)} offen lds")
    p.label("L_h1_small_done")
    epoch_load(p)
    progs.append(p)
    def p1_loop(name):
        pp=Prog(name); m=RH.mark()
        q=VmQ(pp); q.add(('st',0),8)
        issue1(pp,q,1)
        pp("s_waitcnt lgkmcnt(0)"); epoch_hash(pp)
        vf=RH.alloc(1); df=RH.alloc(1)
        def post(i):
            if i==0 and stop_after>=2:
                p24_ids(pp); b64_voffs(pp,RH,vW)
            if i==2 and WPF:
                pp(f"s_lshl_b32 {s(S_T0)}, s2, 2"); pp(f"s_add_u32 {s(S_T0)}, {s(S_T0)}, {s(S_W)}")
                for k,(ptr,size) in enumerate(((S_W2,0x80000),(S_WO,0x80000),(S_W3,0x158000),(S_W4,0x158000))):
                    set_srd(pp,SRD_T,ptr,size)
                    pp(f"s_lshl_b32 {s(S_T0+1)}, {s(S_T0)}, 10")
                    pp(f"buffer_load_dwordx4 {vr(dpf,4)}, {v(vl)}, {srd(SRD_T)}, {s(S_T0+1)} offen"); q.add('pf')
                    if size>0x100000:
                        pp(f"s_add_u32 {s(S_T0+1)}, {s(S_T0+1)}, 0x100000")
                        pp(f"buffer_load_dwordx4 {vr(dpf,4)}, {v(vl)}, {srd(SRD_T)}, {s(S_T0+1)} offen"); q.add('pf')
            if i==5:
                pp(f"v_and_b32 {v(vf)}, 7, v0"); pp(f"v_lshlrev_b32 {v(vf)}, 2, {v(vf)}")
                pp(f"s_lshl_b32 {s(S_T0)}, s2, 7"); pp(f"s_add_u32 {s(K_O)}, {s(S_T0)}, {FL(4):#x}")
                pp(f"buffer_load_dword {v(df)}, {v(vf)}, {srd(SRD_WS)}, {s(K_O)} offen sc1"); q.add('xf')
            if i>=5 and stop_after>=2:
                if i==5: set_srd(pp,SRD_T,S_W2,0x80000)
                pp(f"s_mov_b32 {s(S_T0)}, {(i-5)<<17:#x}")
                q.add('w2',dma64(pp,vW,SRD_T,s(S_T0),SB[i-5]))
        for i in range(8):
            q.need(('st',i))
            if i==0: stamp(pp,"h_w0")
            if i==7:
                q.need('xf')
                pp(f"s_cmp_lt_u32 {s(S_CT)}, 8"); pp("s_cbranch_scc1 L_h1_noxs")
                pp(f"s_cmp_lg_u32 {s(S_W)}, 0"); pp("s_cbranch_scc1 L_h1_noxs")
                pp(f"s_mov_b32 {s(S_T0+1)}, 0x40000")
                pp.label("L_h1_xspoll")
                pp(f"v_cmp_ne_u32 vcc, {s(S_TAG)}, {v(df)}")
                pp(f"s_cmp_eq_u64 vcc, 0"); pp("s_cbranch_scc1 L_h1_xsok")
                pp(f"buffer_load_dword {v(df)}, {v(vf)}, {srd(SRD_WS)}, {s(K_O)} offen sc1")
                pp("s_waitcnt vmcnt(0)")
                pp(f"s_sub_u32 {s(S_T0+1)}, {s(S_T0+1)}, 1"); pp(f"s_cmp_lg_u32 {s(S_T0+1)}, 0"); pp("s_cbranch_scc1 L_h1_xspoll")
                pp.label("L_h1_xsok")
                pp(f"s_lshl_b32 {s(S_T0)}, {s(S_RT)}, 10"); pp(f"s_add_u32 {s(S_T0)}, {s(S_T0)}, {ST1_OFF:#x}")
                pp(f"s_mov_b32 m0, {L_STATS}")
                pp(f"buffer_load_dwordx4 {v(vl)}, {srd(SRD_WS)}, {s(S_T0)} offen sc1 lds")
                pp.label("L_h1_noxs")
            pp("s_barrier")
            if i+2<8: issue1(pp,q,i+2)
            post(i)
        pp("s_waitcnt vmcnt(4)")
        RH.release(m)
        return pp
    pa=p1_loop("h1_loop"); progs.append(pa)
    p=Prog("h2"); p.label("L_h1_done")
    stamp(p,"hm1_end")
    p("s_barrier")
    if stop_after<2:
        return p
    p(f"s_mov_b32 {s(S_T0)}, {3<<17:#x}")
    dma64(p,vW,SRD_T,s(S_T0),SB[3])
    for g_ in range(4): a64_voffs(p,RH,vAh+4*g_,1024,SHIFTS[g_],check=True)
    if stop_after>=3:
        p(f"s_cmp_ge_u32 {s(S_CT)}, 11")
        p(f"s_cselect_b32 {s(SRD_B0)}, {s(S_WO)}, {s(S_W3)}"); p(f"s_cselect_b32 {s(SRD_B0+1)}, {s(S_WO+1)}, {s(S_W3+1)}")
        p(f"s_mov_b32 {s(S_T0)}, 0x158000"); p(f"s_cselect_b32 {s(SRD_B0+2)}, 0x80000, {s(S_T0)}"); p(f"s_mov_b32 {s(SRD_B0+3)}, 0x20000")
        for k in range(4): p(f"s_mov_b32 {s(SRD_B1+k)}, {s(SRD_B0+k)}")
        p(f"s_movk_i32 {s(S_T0+1)}, 2752"); p(f"s_cselect_b32 {s(S_T0)}, 1024, {s(S_T0+1)}")
        p(f"s_sub_u32 {s(S_T0+2)}, {s(S_CT)}, 11"); p(f"s_cselect_b32 {s(S_T0+2)}, {s(S_CT)}, {s(S_T0+2)}")
        p(f"s_lshl_b32 {s(S_T0+2)}, {s(S_T0+2)}, 8"); p(f"s_add_u32 {s(S_T0+3)}, {s(S_T0+2)}, 128")
        b128_voffs(p,RH,vB,S_T0,S_T0,S_T0+2,S_T0+3)
    att_ids(p); push_o(p,RH,PA)
    p(f"s_cmp_lg_u32 {s(S_W)}, 0"); p("s_cbranch_scc1 L_h2_noatt0")
    set_srd(p,SRD_T,S_WPHI,16384)
    p(f"s_lshr_b32 {s(S_T0)}, {s(S_HD)}, 1"); p(f"s_lshl_b32 {s(S_T0)}, {s(S_T0)}, 10")
    p(f"s_mov_b32 m0, {L_WF}")
    p(f"buffer_load_dwordx4 {v(vl)}, {srd(SRD_T)}, {s(S_T0)} offen lds")
    p.label("L_h2_noatt0")
    set_srd(p,SRD_A,S_WS,0x200000,H_OFF)
    p("s_waitcnt vmcnt(0)")
    vkf=RH.alloc(1); dkf=RH.alloc(1)
    m0=RH.mark()
    RA=Regs(m0,m0+72); RB=Regs(m0+72,RH.limit)
    p(f"v_and_b32 {v(vkf)}, 31, v0"); p(f"v_lshlrev_b32 {v(vkf)}, 2, {v(vkf)}")
    p(f"s_lshl_b32 {s(S_T0)}, s2, 7"); p(f"s_add_u32 {s(K_PB0+2)}, {s(S_T0)}, {FL(3):#x}")
    kr=kv_reduce(p,RA,vl); next(kr)
    ab=att_blocks(p,RB,S_WAVE); next(ab)
    p("s_barrier")
    q=VmQ(p)
    p(f"buffer_load_dword {v(dkf)}, {v(vkf)}, {srd(SRD_WS)}, {s(K_PB0+2)} offen sc1"); q.add('kf')
    def issue2(g):
        p(f"s_mov_b32 {s(S_T0)}, {g*256}")
        q.add(('st',g),dma64(p,vAh+4*g,SRD_A,s(S_T0),SA[g],ASC))
    for g_ in range(3): issue2(g_)
    q.need(('st',0)); stamp(p,"p2_w0")
    p("s_barrier")
    issue2(3)
    p(f"s_mov_b32 {s(S_T0+1)}, 0x40000")
    p.label("L_kvpoll")
    p(f"v_cmp_ne_u32 vcc, {s(S_TAG)}, {v(dkf)}")
    p(f"s_and_b32 {s(S_T0+2)}, vcc_lo, 0x3ffff"); p("s_cbranch_scc0 L_kvpoll_ok")
    p(f"buffer_load_dword {v(dkf)}, {v(vkf)}, {srd(SRD_WS)}, {s(K_PB0+2)} offen sc1")
    p("s_waitcnt vmcnt(0)")
    p(f"s_sub_u32 {s(S_T0+1)}, {s(S_T0+1)}, 1"); p(f"s_cmp_lg_u32 {s(S_T0+1)}, 0"); p("s_cbranch_scc1 L_kvpoll")
    p.label("L_kvpoll_ok")
    stamp(p,"p2_kvflags")
    next(kr); q.add('part',8)
    next(ab); q.add('q')
    q.need(('st',1)); p("s_barrier")
    lds_signal(p,RH,const=C_KVF)
    for g_ in range(2,4):
        q.need(('st',g_)); p("s_barrier")
    p("s_barrier")
    stamp(p,"p2_G")
    def pfB(i):
        if stop_after<3: return
        u=uid()
        p(f"s_cmp_eq_u32 {s(S_CT)}, 15"); p(f"s_cbranch_scc1 L_pfB{u}")
        rot3(p,i,S_T0); dmaB128(p,vB,S_T0,SB[i])
        p.label(f"L_pfB{u}")
    p("s_waitcnt vmcnt(0)")
    pfB(0); pfB(1)
    try: kr.send("lgkmcnt(0)")
    except StopIteration: pass
    stamp(p,"p2_red")
    pfB(2); pfB(3)
    RP3=m0
    if stop_after>=3 and RPF3:
        p(f"s_cmp_eq_u32 {s(S_CT)}, 15"); p("s_cbranch_scc1 L_rp3_skip")
        for j in range(4,8):
            rot3(p,j,S_T0)
            p(f"s_mul_i32 {s(S_T0+1)}, {s(S_T0)}, {s(K_PB0)}"); p(f"s_mul_i32 {s(S_T0+2)}, {s(S_T0)}, {s(K_PB1)}")
            r=(RP3+3)//4*4+16*(j-4)
            p(f"buffer_load_dwordx4 {vr(r,4)}, {v(vB)}, {srd(SRD_B0)}, {s(S_T0+1)} offen")
            p(f"buffer_load_dwordx4 {vr(r+4,4)}, {v(vB+1)}, {srd(SRD_B0)}, {s(S_T0+1)} offen offset:1024")
            p(f"buffer_load_dwordx4 {vr(r+8,4)}, {v(vB+2)}, {srd(SRD_B1)}, {s(S_T0+2)} offen")
            p(f"buffer_load_dwordx4 {vr(r+12,4)}, {v(vB+3)}, {srd(SRD_B1)}, {s(S_T0+2)} offen offset:1024")
        p.label("L_rp3_skip")
    RP3a=(RP3+3)//4*4
    RP4=RP3a+64
    RH.next=RP4+16*7; RH.hi=max(RH.hi,RH.next)
    ab.send("vmcnt(63)")
    next(ab)
    stamp(p,"p2_att")
    RH.hi=max(RH.hi,RA.hi,RB.hi)
    o_arrive(p,RH,PA,"o_h")
    if stop_after<3: return p
    progs.append(p)
    p=Prog("h3_dispatch")
    p(f"s_cmp_eq_u32 {s(S_CT)}, 15"); p("s_cbranch_scc1 L_h3_idle")
    p(f"s_cmp_ge_u32 {s(S_CT)}, 11"); p("s_cbranch_scc1 L_h3_wo")
    progs.append(p)
    def rot4(pp,i,dst):
        pp(f"s_add_u32 {s(dst)}, {s(S_ROT)}, {i}"); pp(f"s_cmp_ge_u32 {s(dst)}, 11"); pp(f"s_cselect_b32 {s(S_T0+7)}, 11, 0"); pp(f"s_sub_u32 {s(dst)}, {s(dst)}, {s(S_T0+7)}")
    def w4dma(pp,i):
        rot4(pp,i,S_T0); pp(f"s_lshl_b32 {s(S_T0)}, {s(S_T0)}, 17"); return dma64(pp,vW,SRD_T,s(S_T0),SB[i%4])
    def w4reg(pp,g_):
        rot4(pp,g_,S_T0); pp(f"s_lshl_b32 {s(S_T0)}, {s(S_T0)}, 17")
        for q_ in range(4):
            off=f" offset:{q_*1024}" if q_ else ""
            pp(f"buffer_load_dwordx4 {vr(RP4+16*(g_-4)+4*q_,4)}, {v(vW+q_)}, {srd(SRD_T)}, {s(S_T0)} offen{off}")
    def set_rot4(pp):
        pp(f"s_mul_i32 {s(S_ROT)}, {s(S_C8)}, {ROT4}"); pp(f"s_lshr_b32 {s(S_ROT)}, {s(S_ROT)}, 3")
    def p3_loop(name,kind):
        pp=Prog(name); m=RH.mark()
        rp=RP3a
        if RPF3:
            vbw=RH.alloc(1)
            pp(f"v_add_u32 {v(vbw)}, {s(K_B)}, {v(vl)}"); pp(f"v_add_u32 {v(vbw)}, 0x10000, {v(vbw)}")
        if kind=='W3':
            set_srd(pp,SRD_A,S_WS,0x200000,X1_OFF); sh=7
            sd=RH.alloc(16,4); va=RH.alloc(1)
            pp(f"v_lshrrev_b32 {v(va)}, 4, v0"); pp(f"v_lshlrev_b32 {v(va)}, 10, {v(va)}")
            pp(f"v_and_b32 {v(sd)}, 15, v0"); pp(f"v_lshlrev_b32 {v(sd)}, 4, {v(sd)}"); pp(f"v_add_u32 {v(va)}, {v(va)}, {v(sd)}")
            pp(f"s_lshl_b32 {s(S_T0)}, {s(S_W)}, 8"); pp(f"s_add_u32 {s(S_T0)}, {s(S_T0)}, {L_ST3}"); pp(f"v_add_u32 {v(va)}, {s(S_T0)}, {v(va)}")
        else:
            sh=18
            set_srd(pp,SRD_A,S_WS,0x201000,O_OFF-4096)
            t0=RH.alloc(); t1=RH.alloc(); t2=RH.alloc(); t3=RH.alloc()
            pp(f"v_lshrrev_b32 {v(t0)}, 3, v0")
            pp(f"s_lshl_b32 {s(S_T0)}, {s(S_RT)}, 2"); pp(f"s_add_u32 {s(S_T0)}, {s(S_T0)}, {s(S_W)}"); pp(f"s_lshl_b32 {s(S_T0)}, {s(S_T0)}, 5")
            pp(f"v_add_u32 {v(t0)}, {s(S_T0)}, {v(t0)}"); pp(f"v_lshlrev_b32 {v(t0)}, 5, {v(t0)}")
            pp(f"v_lshrrev_b32 {v(t2)}, 4, v0"); pp(f"v_and_b32 {v(t1)}, 7, v0")
            for qq in range(4):
                if qq&1: pp(f"v_or_b32 {v(t3)}, 4, {v(t2)}")
                else: pp(f"v_mov_b32 {v(t3)}, {v(t2)}")
                pp(f"v_xor_b32 {v(t3)}, {v(t3)}, {v(t1)}")
                pp(f"v_lshrrev_b32 {v(vA+qq)}, 1, {v(t3)}"); pp(f"v_lshlrev_b32 {v(vA+qq)}, 16, {v(vA+qq)}")
                pp(f"v_and_b32 {v(t3)}, 1, {v(t3)}"); pp(f"v_lshlrev_b32 {v(t3)}, 4, {v(t3)}")
                pp(f"v_add_u32 {v(vA+qq)}, {v(vA+qq)}, {v(t3)}"); pp(f"v_add_u32 {v(vA+qq)}, {v(vA+qq)}, {v(t0)}")
                pp(f"v_add_u32 {v(vA+qq)}, {4096+qq*256-qq*1024}, {v(vA+qq)}")
        vt3=RH.alloc(2)
        if TOUCH and kind=='W3':
            pp(f"v_lshrrev_b32 {v(vt3)}, 3, v0"); pp(f"v_and_b32 {v(vt3+1)}, 7, v0"); pp(f"v_lshlrev_b32 {v(vt3+1)}, 7, {v(vt3+1)}")
            pp(f"s_lshl_b32 {s(S_T0)}, {s(S_RT)}, 7"); pp(f"s_lshr_b32 {s(S_T0+1)}, {s(S_J)}, 3"); pp(f"s_lshl_b32 {s(S_T0+1)}, {s(S_T0+1)}, 5"); pp(f"s_add_u32 {s(S_T0)}, {s(S_T0)}, {s(S_T0+1)}")
            pp(f"s_lshl_b32 {s(S_T0+1)}, {s(S_W)}, 3"); pp(f"s_add_u32 {s(S_T0)}, {s(S_T0)}, {s(S_T0+1)}")
            pp(f"v_add_u32 {v(vt3)}, {s(S_T0)}, {v(vt3)}"); pp(f"v_lshlrev_b32 {v(vt3)}, 10, {v(vt3)}"); pp(f"v_add_u32 {v(vt3)}, {v(vt3)}, {v(vt3+1)}")
        pp("s_barrier")
        q=VmQ(pp)
        if TOUCH and kind=='W3':
            pp(f"buffer_load_dword {v(vt3+1)}, {v(vt3)}, {srd(SRD_A)}, 0 offen{ASC}"); q.add('touch')
        def issue3(i):
            rot3(pp,i,S_T0); pp(f"s_lshl_b32 {s(S_T0+3)}, {s(S_T0)}, {sh}")
            q.add(('st',i),dmaA128(pp,vA,s(S_T0+3),SA[i%4],ASC))
            if i>=4:
                if RPF3:
                    r=rp+16*(i-4); o=SB[i%4]-65536
                    pp(f"ds_write_b128 {v(vbw)}, {vr(r,4)} offset:{o}"); pp(f"ds_write_b128 {v(vbw)}, {vr(r+4,4)} offset:{o+1024}")
                    pp(f"ds_write_b128 {v(vbw)}, {vr(r+8,4)} offset:{o+8192}"); pp(f"ds_write_b128 {v(vbw)}, {vr(r+12,4)} offset:{o+8192+1024}")
                else: q.add(('st',i),dmaB128(pp,vB,S_T0,SB[i%4]))
        D3=int(os.environ.get('D3','3'))
        for i_ in range(D3): issue3(i_)
        if kind=='W3':
            pp(f"s_lshl_b32 {s(S_T0)}, {s(S_RT)}, 2"); pp(f"s_add_u32 {s(S_T0)}, {s(S_T0)}, {s(S_W)}"); pp(f"s_lshl_b32 {s(S_T0)}, {s(S_T0)}, 12")
            pp(f"s_add_u32 {s(S_T0)}, {s(S_T0)}, {ST_OFF:#x}")
            for j in range(4):
                pp(f"buffer_load_dwordx4 {vr(sd+4*j,4)}, {v(vl)}, {srd(SRD_WS)}, {s(S_T0)} offen offset:{j*1024} sc1"); q.add('stat')
        for i in range(8):
            q.need(('st',i))
            if RPF3 and i>=2: pp("s_waitcnt lgkmcnt(0)")
            if i==0: stamp(pp,"p3_w0")
            pp("s_barrier")
            if i+D3<8: issue3(i+D3)
            if i>=5 and stop_after>=4:
                if i==5: set_srd(pp,SRD_T,S_W4,0x158000); set_rot4(pp)
                q.add('w4',w4dma(pp,i-5))
            if kind=='W3' and i==1:
                q.need('stat')
                for j in range(1,4):
                    for k in range(4): pp(f"v_add_f32 {v(sd+k)}, {v(sd+k)}, {v(sd+4*j+k)}")
                pp(f"ds_write_b128 {v(va)}, {vr(sd,4)}"); pp("s_waitcnt lgkmcnt(0)")
        RH.release(m)
        return pp
    pa=p3_loop("h3_w3",'W3'); pa("s_branch L_h3_done"); progs.append(pa)
    pb=p3_loop("h3_wo",'Wo'); pb.items.insert(0,('l',"L_h3_wo:")); progs.append(pb)
    p=Prog("h4"); p.label("L_h3_done")
    p("s_barrier")
    if stop_after<4:
        p.label("L_h3_idle"); return p
    w4dma(p,3)
    p("s_branch L_h4_go")
    p.label("L_h3_idle")
    set_srd(p,SRD_T,S_W4,0x158000); set_rot4(p)
    for g_ in range(4): w4dma(p,g_)
    p.label("L_h4_go")
    if RPF:
        vw4=RH.alloc(1)
        p(f"v_add_u32 {v(vw4)}, {s(K_A)}, {v(vl)}"); p(f"v_add_u32 {v(vw4)}, 0x10000, {v(vw4)}")
        for g_ in range(4,11):
            w4reg(p,g_)
            if g_%RP4STEP==RP4STEP-1: p("s_waitcnt vmcnt(0)")
    a64_voffs(p,RH,vAh,HID_PITCH)
    set_srd(p,SRD_A,S_WS,2048*HID_PITCH,HID_OFF)
    vt4=RH.alloc(2)
    if TOUCH:
        p(f"v_cmp_lt_u32 vcc, 21, v0"); p(f"v_cndmask_b32 {v(vt4)}, 0, 1, vcc")
        p(f"v_mul_u32_u24 {v(vt4+1)}, 22, {v(vt4)}"); p(f"v_sub_u32 {v(vt4+1)}, v0, {v(vt4+1)}"); p(f"v_lshlrev_b32 {v(vt4+1)}, 7, {v(vt4+1)}")
        p(f"s_lshl_b32 {s(S_T0)}, {s(S_R64)}, 6"); p(f"s_lshl_b32 {s(S_T0+1)}, {s(S_C8)}, 3"); p(f"s_add_u32 {s(S_T0)}, {s(S_T0)}, {s(S_T0+1)}")
        p(f"s_lshl_b32 {s(S_T0+1)}, {s(S_W)}, 1"); p(f"s_add_u32 {s(S_T0)}, {s(S_T0)}, {s(S_T0+1)}")
        p(f"v_add_u32 {v(vt4)}, {s(S_T0)}, {v(vt4)}"); p(f"v_mul_u32_u24 {v(vt4)}, {HID_PITCH}, {v(vt4)}"); p(f"v_add_u32 {v(vt4)}, {v(vt4)}, {v(vt4+1)}")
        p(f"v_mov_b32 {v(vt4+1)}, 0x80000000"); p(f"v_cmp_lt_u32 vcc, 43, v0"); p(f"v_cndmask_b32 {v(vt4)}, {v(vt4)}, {v(vt4+1)}, vcc")
    if RPF: p("s_waitcnt vmcnt(0)")
    p("s_barrier")
    q=VmQ(p)
    if TOUCH:
        p(f"buffer_load_dword {v(vt4+1)}, {v(vt4)}, {srd(SRD_A)}, 0 offen{ASC}"); q.add('touch')
    def issue4(g):
        rot4(p,g,S_T0); p(f"s_lshl_b32 {s(S_T0)}, {s(S_T0)}, 8")
        q.add(('st',g),dma64(p,vAh,SRD_A,s(S_T0),SA[g%4],ASC))
        if g>=4:
            if RPF:
                for q_ in range(4): p(f"ds_write_b128 {v(vw4)}, {vr(RP4+16*(g-4)+4*q_,4)} offset:{SB[g%4]-65536+q_*1024}")
            else:
                q.add(('st',g),w4dma(p,g))
    D4=int(os.environ.get('D4','3'))
    for g_ in range(D4): issue4(g_)
    for i in range(11):
        q.need(('st',i))
        if RPF and i>=2: p("s_waitcnt lgkmcnt(0)")
        if i==0: stamp(p,"p4_w0")
        stamp(p,f"h4_w{i}")
        p("s_barrier")
        stamp(p,f"h4_b{i}")
        if i+D4<11: issue4(i+D4)
        stamp(p,f"h4_i{i}")
    return p

ASC=os.environ.get("ASC"," sc1")
TOUCH=int(os.environ.get("TOUCH","0"))
DBGT=int(os.environ.get("DBGT","0"))
WPF=int(os.environ.get("WPF","1"))
RPF=int(os.environ.get("RPF","0"))
RPF3=int(os.environ.get("RPF3","0"))
ROT4=int(os.environ.get("ROT4","0"))
RP4STEP=int(os.environ.get("RP4STEP","1"))

def build(stop_after=4):
    progs=[]; lim=250 if STAMP else 256
    pe=Prog("entry")
    if STAMP:
        for k in range(10): pe(f"s_mov_b32 s{80+2*k}, 0")
    stamp(pe,0); stamp(pe,1)
    if DBGT: pe("s_memrealtime s[96:97]")
    entry(pe); progs.append(pe)
    RH=Regs(2,lim)
    ph=helper_program(progs,RH,stop_after)
    stamp_dump(ph); ph("s_branch L_end"); progs.append(ph)
    R=Regs(2,lim)
    x1keep=R.alloc(8,4); PA=R.alloc(1); PAo=R.alloc(1); mph=R.mark()
    G=G128(R); X=XP(R,quad=True)
    pc=Prog("c_dispatch"); pc.label("L_compute")
    if int(os.environ.get("PRIO","1"))==1: pc("s_setprio 3")
    zero_counters(pc,R)
    pc("s_waitcnt lgkmcnt(0)"); epoch_load(pc)
    pc(f"s_cmp_ge_u32 {s(S_CT)}, 8"); pc("s_cbranch_scc1 L_c1_qw")
    progs.append(pc)
    class Hash:  pass
    def with_hash(fn,p,*a):
        n0=len(p.items); fn(p,*a)
        for i in range(n0,len(p.items)):
            k,it=p.items[i]
            if k=='c' and it==";EPOCH":
                tmp=Prog("t"); epoch_hash(tmp); p.items[i+1:i+1]=tmp.items; return
        raise Exception("no epoch marker found")
    pk=Prog("c1_kv"); with_hash(compute_p1_KV,pk,R,G,X,PA); pk("s_branch L_c1_done"); progs.append(pk)
    pq=Prog("c1_qw"); pq.label("L_c1_qw"); with_hash(compute_p1_QW,pq,R,G,X,PA); progs.append(pq)
    pd=Prog("c1_done"); pd.label("L_c1_done")
    stamp(pd,"e1_epi"); arrive_push(pd,R,C_P1,4,PA,"p1",started=True); stamp(pd,"e1_push")
    def finish(p): stamp_dump(p); p("s_branch L_end")
    if stop_after==1: finish(pd)
    progs.append(pd); R.release(mph)
    if stop_after>=2:
        G6=G64(R); X6=XP(R)
        p2=Prog("c2"); compute_p2(p2,R,G6,X6,x1keep,PA,PAo)
        if stop_after==2: o_arrive(p2,R,PAo,"o_c2")
        if stop_after==2: finish(p2)
        progs.append(p2); R.release(mph)
    if stop_after>=3:
        G=G128(R); X=XP(R)
        p3=Prog("c3_dispatch")
        p3(f"s_cmp_eq_u32 {s(S_CT)}, 15"); p3("s_cbranch_scc1 L_c3_idle")
        p3(f"s_cmp_ge_u32 {s(S_CT)}, 11"); p3("s_cbranch_scc1 L_c3_wo")
        progs.append(p3)
        pa=Prog("c3_w3"); compute_p3(pa,R,G,X,'W3',PA,PAo); pa("s_branch L_c3_done"); progs.append(pa)
        pb=Prog("c3_wo"); pb.label("L_c3_wo"); compute_p3(pb,R,G,X,'Wo',PA,PAo); progs.append(pb)
        pz=Prog("c3_done"); pz.label("L_c3_done")
        stamp(pz,"e3_epi"); arrive_push(pz,R,C_P3,4,PA,"p3"); stamp(pz,"e3_push")
        pz("s_branch L_c4")
        pz.label("L_c3_idle")
        o_arrive(pz,R,PAo,"o_cidle")
        pz(f"s_cmp_lg_u32 {s(S_RT)}, 0"); pz("s_cbranch_scc1 L_c4")
        pz(f"s_cmp_lg_u32 {s(S_WAVE)}, 1"); pz("s_cbranch_scc1 L_c4")
        m=R.mark(); a=R.alloc(1); d=R.alloc(4,4)
        pz(f"v_lshlrev_b32 {v(a)}, 4, v0")
        pz(f"s_mov_b32 {s(S_T0)}, {STARTED:#x}"); pz(f"s_mov_b32 {s(S_T0+1)}, 0x40000")
        pz.label("L_ep_poll")
        pz(f"buffer_load_dwordx4 {vr(d,4)}, {v(a)}, {srd(SRD_WS)}, {s(S_T0)} offen sc1")
        pz("s_waitcnt vmcnt(0)")
        for k in range(4): pz(f"v_xor_b32 {v(d+k)}, {s(S_TAG)}, {v(d+k)}")
        pz(f"v_or_b32 {v(d)}, {v(d)}, {v(d+1)}"); pz(f"v_or_b32 {v(d+2)}, {v(d+2)}, {v(d+3)}"); pz(f"v_or_b32 {v(d)}, {v(d)}, {v(d+2)}")
        pz(f"v_cmp_ne_u32 vcc, 0, {v(d)}")
        pz(f"s_cmp_eq_u64 vcc, 0"); pz("s_cbranch_scc1 L_ep_go")
        pz(f"s_sub_u32 {s(S_T0+1)}, {s(S_T0+1)}, 1"); pz(f"s_cmp_lg_u32 {s(S_T0+1)}, 0"); pz("s_cbranch_scc1 L_ep_poll")
        pz("s_branch L_c4")
        pz.label("L_ep_go")
        pz(f"v_mov_b32 {v(a)}, 0"); pz(f"v_mov_b32 {v(d)}, {s(S_TAG)}"); pz(f"s_mov_b32 {s(S_T0)}, {EPOCH_OFF:#x}")
        pz("s_mov_b64 exec, 1")
        pz(f"buffer_store_dword {v(d)}, {v(a)}, {srd(SRD_WS)}, {s(S_T0)} offen sc1")
        pz("s_mov_b64 exec, -1")
        R.release(m)
        pz.label("L_c4")
        if stop_after==3: finish(pz)
        progs.append(pz); R.release(mph)
    if stop_after>=4:
        G6=G64(R); X6=XP(R)
        p4=Prog("c4"); compute_p4(p4,R,G6,X6,x1keep)
        stamp(p4,"end"); stamp_dump(p4)
        if DBGT:
            p4("s_memrealtime s[94:95]"); p4("s_waitcnt lgkmcnt(0)")
            set_srd(p4,SRD_T,S_DBG,256)
            p4("s_not_b32 s96, s96"); p4("v_mov_b32 v2, 0"); p4("v_mov_b32 v3, s96"); p4("v_mov_b32 v4, s94"); p4("s_mov_b64 exec, 1")
            p4(f"buffer_atomic_umax v3, v2, {srd(SRD_T)}, 0 offen"); p4(f"buffer_atomic_umax v4, v2, {srd(SRD_T)}, 0 offen offset:4")
            p4("s_mov_b64 exec, -1")
        progs.append(p4)
    pend=Prog("end"); pend.label("L_end"); pend("s_endpgm"); progs.append(pend)
    vmax=max(R.hi,RH.hi)
    lines=[]; errs=[]
    for pr in progs:
        o,e=fix_hazards(pr); lines+=o; errs+=e
    if errs:
        for e in errs[:40]: print("ERR",e)
        raise SystemExit(1)
    return lines,vmax

def emit(path,lines,vmax,header_from="gated_mix__linear_kernel_hedgehog__mixer_s_mlp__prompt.s.ref"):
    hdr=[l for l in open(header_from).read().split("\n") if l.startswith(";") and "@launch" not in l and "Override launch" not in l and "grid=ceil" not in l]
    nv=256 if STAMP else (vmax+7)//8*8
    t="\n".join(hdr)+"\n"
    t+=f"; @launch grid=(256,1,1) block=(512,1,1) lds={LDS_SIZE}\n"
    t+='.amdgcn_target "amdgcn-amd-amdhsa--gfx950"\n.text\n'
    t+=f".globl {KNAME}\n.p2align 8\n.type {KNAME},@function\n{KNAME}:\n"
    t+="\n".join(lines)+"\n"
    t+=f""".section .rodata,"a"
.p2align 6
.amdhsa_kernel {KNAME}
  .amdhsa_next_free_vgpr {nv}
  .amdhsa_next_free_sgpr 100
  .amdhsa_accum_offset {nv}
  .amdhsa_group_segment_fixed_size 0
  .amdhsa_kernarg_size 104
  .amdhsa_user_sgpr_count 2
  .amdhsa_user_sgpr_kernarg_segment_ptr 1
  .amdhsa_system_sgpr_workgroup_id_x 1
  .amdhsa_float_denorm_mode_32 3
.end_amdhsa_kernel
"""
    open(path,"w").write(t)

if __name__=="__main__":
    lines,vmax=build(int(os.environ.get("STOP","4")))
    out=sys.argv[1] if len(sys.argv)>1 else "k.s"
    emit(out,lines,vmax)
    print("vgprs",vmax,"lines",len(lines))
```
